```python
import torch

def _softmax(x, axis=-1):
    return torch.softmax(x, dim=axis)

def _gelu(x):
    return torch.nn.functional.gelu(x, approximate='tanh')

def _silu(x):
    return torch.nn.functional.silu(x)

def _sigmoid(x):
    return torch.sigmoid(x)

def _layernorm(x, axis=-1, eps=1e-05):
    m = x.mean(dim=axis, keepdim=True)
    v = x.var(dim=axis, keepdim=True, unbiased=False)
    return (x - m) / torch.sqrt(v + eps)

def _scatter_add(tgt, idx, src, axis=0):
    return tgt.clone().index_add_(axis, idx, src)

def _segment_sum(src, seg, n):
    out = torch.zeros((n,) + src.shape[1:], dtype=src.dtype)
    return out.index_add_(0, seg, src)

def _pad(x, pw):
    flat = tuple((v for pair in reversed(pw) for v in pair))
    return torch.nn.functional.pad(x, flat)
kernel_name = 'adaLN_cond__mha_block_cached__moe_arch_mod__prompt'

def setup_inputs():

    _w = lambda a: (lambda t: t.to(torch.bfloat16) if t.is_floating_point() else t)(torch.as_tensor(a))

    def _A_setup():
        B, Sq, D = (1, 2048, 448)
        H, Sk, Dh = (16, 2048, 256)
        return {'x': _w((lambda *s: torch.randn(*s, dtype=torch.bfloat16) * 0.05)(B, Sq, D)), 'k_cache': _w((lambda *s: torch.randn(*s, dtype=torch.bfloat16) * 3.2)(B, H, Sk, Dh)), 'v_cache': _w((lambda *s: torch.randn(*s, dtype=torch.bfloat16) * 0.4)(B, H, Sk, Dh)), 'wq': _w((lambda *s: torch.randn(*s, dtype=torch.bfloat16) * 3.2)(D, H * Dh) * D ** (-0.5)), 'wo': _w((lambda *s: torch.randn(*s, dtype=torch.bfloat16) * 0.4)(H * Dh, D) * (H * Dh) ** (-0.5))}
    _A_in = _A_setup()

    def _B_setup():
        B, S, D, F, C = (1, 2048, 448, 1792, 1)
        return {'x': _w((lambda *s: torch.randn(*s, dtype=torch.bfloat16) * 0.05)(B, S, D)), 'w_r': _w((lambda *s: torch.randn(*s, dtype=torch.bfloat16) * 3.2)(D)), 'w_gate': _w((lambda *s: torch.randn(*s, dtype=torch.bfloat16) * 0.1)(D, F)), 'w_up': _w((lambda *s: torch.randn(*s, dtype=torch.bfloat16) * 0.1)(D, F)), 'w_down': _w((lambda *s: torch.randn(*s, dtype=torch.bfloat16) * 0.1)(F, D))}
    _B_in = _B_setup()
    return {'A_x': _A_in['x'], 'A_k_cache': _A_in['k_cache'], 'A_v_cache': _A_in['v_cache'], 'A_wq': _A_in['wq'], 'A_wo': _A_in['wo'], 'B_x': _B_in['x'], 'B_w_r': _B_in['w_r'], 'B_w_gate': _B_in['w_gate'], 'B_w_up': _B_in['w_up'], 'B_w_down': _B_in['w_down'], 'c': _w((lambda *s: torch.randn(*s, dtype=torch.bfloat16) * 0.1)(1, 448) * 8.0), 'w_mod': _w((lambda *s: torch.randn(*s, dtype=torch.bfloat16) * 0.1)(448, 6 * 448) * 448 ** (-0.5) * 8.0)}

def reference(A_x, A_k_cache, A_v_cache, A_wq, A_wo, B_x, B_w_r, B_w_gate, B_w_up, B_w_down, c, w_mod):

    def _A_ref(x, k_cache, v_cache, wq, wo):
        B, Sq, D = x.shape
        H, Dh = (16, 256)
        q = (lambda x, *d: x.permute(*d))((x @ wq).reshape(B, Sq, H, Dh), 0, 2, 1, 3)
        scores = torch.einsum('bhqd,bhkd->bhqk', q, k_cache) * Dh ** (-0.5)
        p = _softmax(scores, axis=-1)
        o = torch.einsum('bhqk,bhkd->bhqd', p, v_cache)
        return (lambda x, *d: x.permute(*d))(o, 0, 2, 1, 3).reshape(B, Sq, H * Dh) @ wo

    def _B_ref(x, w_r, w_gate, w_up, w_down):
        B, S, D = x.shape
        C = 1
        r = x @ w_r
        idx = torch.argsort(-r, axis=-1)[:, :C]
        idx_e = (lambda x, n, axis: torch.repeat_interleave(x, n, dim=axis))(idx.reshape(B, C, 1), D, axis=2)
        x_sel = (lambda x, i, axis: torch.take_along_dim(x, i, dim=axis))(x, idx_e, axis=1)
        g = _silu(x_sel @ w_gate)
        u = x_sel @ w_up
        y = g * u @ w_down
        r_sel = _sigmoid((lambda x, i, axis: torch.take_along_dim(x, i, dim=axis))(r, idx, axis=1))
        y = y * r_sel.reshape(B, C, 1)
        b_off = (torch.arange(B) * S).reshape(B, 1)
        flat_idx = (idx + b_off).reshape(B * C)
        zero = (x * 0.0).reshape(B * S, D)
        upd = _scatter_add(zero, flat_idx, y.reshape(B * C, D), axis=0)
        return x + upd.reshape(B, S, D)
    x = A_x
    mod = (_silu(c) @ w_mod).reshape(c.shape[0], 6, 1, -1)
    sa, ca, ga, sb, cb, gb = (mod[:, 0].clone(), mod[:, 1].clone(), mod[:, 2].clone(), mod[:, 3].clone(), mod[:, 4].clone(), mod[:, 5].clone())
    h = _layernorm(x, axis=-1) * (1 + ca) + sa
    x = x + ga * _A_ref(h, A_k_cache, A_v_cache, A_wq, A_wo)
    h = _layernorm(x, axis=-1) * (1 + cb) + sb
    x = x + gb * _B_ref(h, B_w_r, B_w_gate, B_w_up, B_w_down)
    return x
```

```python
import re

def R(t, lo, n=1):
    return f'{t}{lo}' if n == 1 else f'{t}[{lo}:{lo+n-1}]'
def RS(t, lo, n=1):
    return frozenset(f'{t}{lo+i}' for i in range(n))

class I:
    __slots__ = ('text', 'kind', 'rd', 'wr', 'cost', 'srcc', 'meta')
    def __init__(self, text, kind, rd=(), wr=(), cost=1, srcc=(), **meta):
        self.text = text; self.kind = kind
        self.rd = frozenset(rd); self.wr = frozenset(wr); self.cost = cost
        self.srcc = frozenset(srcc); self.meta = meta
    def __repr__(self): return self.text

_reg_re = re.compile(r'\b([va])(?:\[(\d+):(\d+)\]|(\d+))')
def regs_of(op):
    s = set()
    for m in _reg_re.finditer(op):
        t = m.group(1)
        if m.group(4) is not None: s.add(f'{t}{m.group(4)}')
        else:
            for i in range(int(m.group(2)), int(m.group(3)) + 1): s.add(f'{t}{i}')
    return s

TRANS = ('v_exp_f32', 'v_log_f32', 'v_rcp_f32', 'v_rsq_f32', 'v_sqrt_f32')
def P(text, **meta):
    t = text.split(';')[0].strip()
    if not t: return I(text, 'comment', cost=0)
    if t.endswith(':') or t.startswith('.'): return I(text, 'label', cost=0)
    mn, _, rest = t.partition(' ')
    ops = [o.strip() for o in rest.split(',')] if rest else []
    if mn.startswith('v_mfma'):
        d, a, b, c = ops[0], ops[1], ops[2], ops[3].split()[0]
        return I(text, 'mfma', rd=regs_of(a) | regs_of(b) | regs_of(c), wr=regs_of(d), srcc=regs_of(c),
                 ab=frozenset(regs_of(a) | regs_of(b)), passes=(8 if '32x32' in mn else 4), **meta)
    if mn.startswith('ds_read') :
        return I(text, 'ds_read', rd=regs_of(ops[1]), wr=regs_of(ops[0]), **meta)
    if mn.startswith('ds_bpermute') or mn.startswith('ds_swizzle'):
        return I(text, 'ds_read', rd=regs_of(','.join(ops[1:])), wr=regs_of(ops[0]), **meta)
    if mn.startswith('ds_write') or mn.startswith('ds_add') or mn.startswith('ds_max'):
        return I(text, 'ds_write', rd=regs_of(rest), **meta)
    if mn.startswith('buffer_load') or mn.startswith('global_load'):
        if t.endswith(' lds') or ' lds ' in t:
            return I(text, 'dma', rd=regs_of(rest), cost=2, **meta)
        return I(text, 'vload', rd=regs_of(','.join(ops[1:])), wr=regs_of(ops[0]), cost=2, **meta)
    if mn.startswith('buffer_store') or mn.startswith('global_store'):
        return I(text, 'vstore', rd=regs_of(rest), cost=2, wide=('x4' in mn or 'x3' in mn),
                 data=frozenset(regs_of(ops[0] if mn.startswith('buffer') else ops[1])), **meta)
    if mn.startswith('buffer_atomic') or mn.startswith('global_atomic'):
        wr = regs_of(ops[0]) if ' sc0' in t else set()
        return I(text, 'vload' if wr else 'vstore', rd=regs_of(rest), wr=wr, cost=2, wide=False, data=frozenset(), **meta)
    if mn.startswith('buffer_'):
        return I(text, 'vmisc', cost=2, **meta)
    if mn == 's_waitcnt': return I(text, 'wait', cost=0, **meta)
    if mn == 's_barrier': return I(text, 'barrier', cost=0, **meta)
    if mn == 's_nop': return I(text, 'nop', cost=0, n=int(ops[0], 0) + 1, **meta)
    if mn.startswith('s_cbranch') or mn in ('s_branch', 's_endpgm'): return I(text, 'branch', cost=0, **meta)
    if mn.startswith('s_'): return I(text, 'salu', cost=0, **meta)
    if mn.startswith('v_'):
        base = mn.replace('_e32', '').replace('_e64', '')
        if base.startswith('v_cmp'):
            return I(text, 'valu', rd=regs_of(','.join(ops[1:])), wsgpr=ops[0], **meta)
        if base in ('v_readfirstlane_b32', 'v_readlane_b32'):
            return I(text, 'valu', rd=regs_of(','.join(ops[1:])), wsgpr=ops[0], rdlane=True, **meta)
        if base.startswith('v_permlane16_swap') or base.startswith('v_permlane32_swap'):
            rr = regs_of(rest)
            return I(text, 'valu', rd=rr, wr=rr, permlane=True, **meta)
        wr = regs_of(ops[0]); rd = regs_of(','.join(ops[1:]))
        if base.startswith('v_fmac') or base.startswith('v_dot2c') or base.startswith('v_pk_fmac') or 'dst_unused:UNUSED_PRESERVE' in t:
            rd |= wr
        if '_dpp' in mn and 'bound_ctrl' not in t: rd |= wr
        kind = 'trans' if base in TRANS else 'valu'
        return I(text, kind, rd=rd, wr=wr, cost=(2 if kind == 'trans' else 1), dpp=('_dpp' in mn), **meta)
    raise ValueError('cannot parse: ' + text)

def states(ins):
    if ins.kind in ('comment', 'label', 'mark'): return 0
    if ins.kind == 'nop': return ins.meta['n']
    return 1

VALU = ('valu', 'trans')
def check_hazards(seq, name=''):
    probs = []
    pos = []; p = 0
    for x in seq:
        pos.append(p); p += states(x)
    def dist(i, j):
        return pos[j] - pos[i] - states(seq[i])
    lastw = {}
    lastc = {}
    lastst = {}
    lgq = []
    vmq = []
    sg = {}
    lastm0 = None
    for j, x in enumerate(seq):
        if x.kind in ('comment', 'label', 'mark'): continue
        if x.kind == 'wait':
            m = re.search(r'lgkmcnt\((\d+)\)', x.text)
            if m:
                n = int(m.group(1))
                while len(lgq) > n: lgq.pop(0)
            m = re.search(r'vmcnt\((\d+)\)', x.text)
            if m:
                n = int(m.group(1))
                while len(vmq) > n: vmq.pop(0)
            continue
        touched = x.rd | x.wr
        for q, nm in ((lgq, 'lgkm'), (vmq, 'vm')):
            for (i, d) in q:
                if d & touched:
                    probs.append(f'{name}: [{j}] {x.text}  touches {sorted(d & touched)[:2]} still pending ({nm}) from [{i}] {seq[i].text}')
        for r in x.rd:
            i = lastw.get(r)
            if i is None: continue
            w = seq[i]; d = dist(i, j); need = 0
            if w.kind == 'mfma':
                lat = {4: 8, 8: 12}[w.meta['passes']]
                if x.kind == 'mfma':
                    if r in x.meta['ab']: need = lat
                    elif x.srcc == w.wr: need = 0
                    else: need = lat - 2
                else: need = lat
            elif w.kind in VALU:
                if x.kind == 'mfma': need = 2
                elif x.meta.get('permlane') or x.meta.get('dpp'): need = 2
                elif x.meta.get('rdlane'): need = 1
                elif w.kind == 'trans' and x.kind != 'trans': need = 1
                if w.kind == 'trans' and need < 1 and x.kind != 'trans': need = 1
            if d < need:
                probs.append(f'{name}: RAW {r}: [{i}] {w.text} -> [{j}] {x.text}: dist {d} < {need}')
        for r in x.wr:
            i = lastw.get(r)
            if i is not None and seq[i].kind == 'mfma' and x.kind != 'mfma':
                lat = {4: 8, 8: 12}[seq[i].meta['passes']]
                if dist(i, j) < lat:
                    probs.append(f'{name}: WAW {r}: [{i}] {seq[i].text} -> [{j}] {x.text}: dist {dist(i,j)} < {lat}')
            if i is not None and seq[i].kind == 'mfma' and x.kind == 'mfma' and x.srcc != seq[i].wr and r not in x.srcc:
                pass
            i = lastc.get(r)
            if i is not None and x.kind in VALU:
                need = {4: 3, 8: 7}[seq[i].meta['passes']]
                if dist(i, j) < need:
                    probs.append(f'{name}: WAR srcC {r}: [{i}] {seq[i].text} -> [{j}] {x.text}: dist {dist(i,j)} < {need}')
            i = lastst.get(r)
            if i is not None:
                need = 2 if x.kind in VALU else 1
                if dist(i, j) < need:
                    probs.append(f'{name}: WAR store data {r}: [{i}] {seq[i].text} -> [{j}] {x.text}')
        tt = x.text.split(';')[0]
        for s, i in list(sg.items()):
            names = [s]
            m = re.match(r's\[(\d+):(\d+)\]', s)
            if m: names += [f's{k}' for k in range(int(m.group(1)), int(m.group(2)) + 1)]
            if s == 'vcc': names = ['vcc']
            used = any(re.search(r'(?<![\w\[:])' + re.escape(n) + r'(?![\w])', tt.partition(' ')[2]) for n in names)
            if not used:
                for mm in re.finditer(r's\[(\d+):(\d+)\]', tt):
                    rng = {f's{k}' for k in range(int(mm.group(1)), int(mm.group(2)) + 1)}
                    if rng & set(names): used = True
            if used and i != j:
                d = dist(i, j)
                need = 5 if x.kind in ('dma', 'vload', 'vstore') else (2 if x.kind in VALU else 0)
                if x.meta.get('wsgpr') == s and x.kind in VALU and not re.search(re.escape(s) + r'.*' + re.escape(s), tt): need = 0
                if d < need: probs.append(f'{name}: VALU-SGPR {s}: [{i}] {seq[i].text} -> [{j}] {x.text}: dist {d} < {need}')
            if dist(i, j) > 8: del sg[s]
        if x.meta.get('wsgpr'): sg[x.meta['wsgpr']] = j
        if x.kind == 'salu' and re.match(r's_\w+\s+m0\b', tt): lastm0 = j
        if x.kind == 'dma' and lastm0 is not None and dist(lastm0, j) < 1:
            probs.append(f'{name}: M0 -> DMA [{j}] {x.text}')
        for r in x.wr: lastw[r] = j
        if x.kind == 'mfma':
            for r in x.srcc: lastc[r] = j
        if x.kind == 'vstore' and x.meta.get('wide'):
            for r in x.meta['data']: lastst[r] = j
        if x.kind in ('ds_read', 'ds_write'): lgq.append((j, x.wr))
        if x.kind in ('dma', 'vload', 'vstore'): vmq.append((j, x.wr))
    return probs

def insert_lgkm_waits(seq, carry=()):
    out = []; q = list(carry)
    for x in seq:
        if x.kind == 'wait':
            m = re.search(r'lgkmcnt\((\d+)\)', x.text)
            if m:
                n = int(m.group(1))
                while len(q) > n: q.pop(0)
            out.append(x); continue
        touched = x.rd | x.wr
        need = -1
        for k, d in enumerate(q):
            if d & touched: need = k
        if need >= 0:
            n = len(q) - 1 - need
            n = min(n, 15)
            out.append(P(f's_waitcnt lgkmcnt({n})'))
            while len(q) > n: q.pop(0)
        out.append(x)
        if x.kind in ('ds_read', 'ds_write'): q.append(x.wr)
    return out, q

def text(seq):
    o = []
    for x in seq:
        o.append(x.text if x.kind in ('label',) else '    ' + x.text)
    return '\n'.join(o) + '\n'

def WT(tag, lgkm0=False):
    return I('; wait ' + str(tag), 'wtag', cost=0, tag=tag, lgkm0=lgkm0)

def resolve_waits(seq):
    out = []; vq = []; lq = []
    def pop(q, n):
        while len(q) > n: q.pop(0)
    for x in seq:
        if x.kind == 'wtag':
            idx = [k for k, (t, d) in enumerate(vq) if t == x.meta['tag']]
            parts = []
            if idx:
                n = len(vq) - 1 - idx[-1]
                assert n <= 63
                parts.append(f'vmcnt({n})'); pop(vq, n)
            if x.meta['lgkm0']:
                parts.append('lgkmcnt(0)'); pop(lq, 0)
            out.append(P('s_waitcnt ' + ' '.join(parts)) if parts else P('s_nop 0'))
            continue
        if x.kind == 'wait':
            m = re.search(r'lgkmcnt\((\d+)\)', x.text)
            if m: pop(lq, int(m.group(1)))
            m = re.search(r'vmcnt\((\d+)\)', x.text)
            if m: pop(vq, int(m.group(1)))
            out.append(x); continue
        touched = x.rd | x.wr
        parts = []
        need = max([k for k, (t, d) in enumerate(vq) if d & touched], default=-1)
        if need >= 0:
            n = min(len(vq) - 1 - need, 63); parts.append(f'vmcnt({n})'); pop(vq, n)
        need = max([k for k, d in enumerate(lq) if d & touched], default=-1)
        if need >= 0:
            n = min(len(lq) - 1 - need, 15); parts.append(f'lgkmcnt({n})'); pop(lq, n)
        if parts: out.append(P('s_waitcnt ' + ' '.join(parts)))
        out.append(x)
        if x.kind in ('ds_read', 'ds_write'): lq.append(x.wr)
        if x.kind in ('dma', 'vload', 'vstore'):
            vq.append((x.meta.get('tag'), x.wr))
            assert len(vq) <= 63, 'vmcnt overflow at ' + x.text
    return out
```

```python
from asmlib import *

NQ = 4
vQ = 0; vS = 128; vP = 160; vF = 192; vNM = 224; vL = 240; vT = 248; vKA = 252; vVE = 253; vVO = 254; vDM = 255
def Q(qt, s): return vQ + 4 * (qt * 8 + s)
def S(kt, qt): return vS + 4 * (kt * 4 + qt)
def Pp(b, qt): return vP + 16 * b + 4 * qt
def F(i): return vF + 4 * (i % 8)
def NM(qt): return vNM + 4 * qt
def L(b, qt): return vL + 4 * b + qt
def O(dt, qt): return 4 * (dt * 4 + qt)
PIECE = 1088; TILE = 16 * PIECE; HALF = 8 * PIECE
sK = 8; sV = 12
sLB = 16
sKo = 20; sVo = 22
sCnt = 24; sThr = 25; sX = 26
sPF = 64; sPFo = 68
PFLDS = 8 * TILE
MF = 'v_mfma_f32_16x16x32_bf16'
DMAFLAGS = ['']

class Opt:
    chain = True; snake = True; X = 100.0; T = 64.0
    bar_gap = 50; ntemp = 4; pf = 0; abl = (); qsnake = False; dflags = ''
    dmaV_gaps = [2, 6, 9, 11, 13, 15, 18, 22]
    t_gaps = [0, 1, 3, 4, 6, 8, 10, 11, 13, 15, 17, 18, 20, 22, 24, 25, 27, 29, 31, 32, 34, 36, 38, 40]
    dmaK_gaps = [2, 9, 16, 23, 30, 37, 42, 46]

def mf_qk(kt, qt, s, first, czero=False):
    d = R('v', S(kt, qt), 4)
    c = ('0' if czero else R('v', NM(qt), 4)) if first else d
    return P(f'{MF} {d}, {R("v", F((kt * 8 + s)), 4)}, {R("v", Q(qt, s), 4)}, {c}')
def qk_list(opt, czero=False):
    out = []
    for kt in range(2):
        for hh in range(2):
            if opt.chain:
                for qt in range(4):
                    for s1 in range(4):
                        s = 4 * hh + s1
                        out.append(mf_qk(kt, qt, s, s == 0, czero))
            else:
                for s1 in range(4):
                    s = 4 * hh + s1
                    qs = range(4) if (not opt.qsnake or s1 % 2 == 0) else range(3, -1, -1)
                    for qt in qs:
                        out.append(mf_qk(kt, qt, s, s == 0, czero))
    return out
def pv_list(opt, b, czero=False):
    out = []
    for dt in range(16):
        qs = list(range(4))
        if opt.snake and dt % 2: qs = qs[::-1]
        for qt in qs:
            d = R('a', O(dt, qt), 4)
            out.append(P(f'{MF} {d}, {R("v", F(dt), 4)}, {R("v", Pp(b, qt), 4)}, {"0" if czero else d}'))
    return out
def rd_k(slot, kt, s):
    return P(f'ds_read_b128 {R("v", F(kt * 8 + s), 4)}, v{vKA} offset:{slot * TILE + kt * HALF + s * 64}')
def rd_v(slot, dt, t):
    a = vVO if dt % 2 else vVE
    return P(f'ds_read_b64_tr_b16 {R("v", F(dt) + 2 * t, 2)}, v{a} offset:{slot * TILE + t * HALF + (dt & ~1) * 32}')
def dma(srd, lb, so, i):
    return [P(f's_add_u32 m0, s{lb}, {i * PIECE - (i % 4) * 1024}'),
            P(f'buffer_load_dwordx4 v{vDM}, s[{srd}:{srd+3}], s{so + i // 4} offen offset:{(i % 4) * 1024}{DMAFLAGS[0]} lds')]
def dma_k(slot, i): return dma(sK, sLB + slot, sKo, i)
def dma_v(slot, i): return dma(sV, sLB + 2 + slot, sVo, i)

def pf_ops():
    return [P(f's_mov_b32 m0, {PFLDS}'), P(f'buffer_load_dword v{vDM}, s[{sPF}:{sPF+3}], s{sPFo} offen lds'),
            P(f's_add_u32 s{sPFo}, s{sPFo}, 16384')]

def softmax_ops(b, kts=(0, 1)):
    groups = []
    for kt in kts:
        for qt in range(4):
            for h in range(2):
                groups.append((kt, qt, h))
    return groups

def schedule(mfmas, fixed, sm_groups, sm_ready, b, opt, tail=()):
    out = []
    ntemp = opt.ntemp // 2
    free_pairs = list(range(ntemp))
    pend = list(sm_groups)
    active = []
    singles = []
    count = 0
    seen_first = set()
    tail = list(tail)
    def emit(x):
        nonlocal count
        out.append(x); count += states(x)
    cur = None
    mcount = {}
    for g, m in enumerate(mfmas):
        emit(m); mcount[g] = count
        cap = 2
        for x in fixed.get(g, []):
            emit(x); cap -= x.cost
        while cap > 0:
            rs = [s for s in singles if s[0] <= count]
            can_exp = False
            if cap >= 2:
                if cur is None and pend and free_pairs and sm_ready[pend[0][:2]] <= g and count - mcount[sm_ready[pend[0][:2]]] >= 8:
                    cur = [pend.pop(0), free_pairs.pop(0), 0]
                can_exp = cur is not None
            if can_exp:
                (kt, qt, h), pr, n = cur
                emit(P(f'v_exp_f32 v{vT + 2 * pr + n}, v{S(kt, qt) + 2 * h + n}')); cap -= 2
                src = L(b, qt) if (qt in seen_first) else L(1 - b, qt)
                seen_first.add(qt)
                singles.append([count + 1, P(f'v_add_f32 v{L(b, qt)}, v{src}, v{vT + 2 * pr + n}'), None])
                cur[2] += 1
                if cur[2] == 2:
                    singles.append([count + 1, P(f'v_cvt_pk_bf16_f32 v{Pp(b, qt) + 2 * kt + h}, v{vT + 2 * pr}, v{vT + 2 * pr + 1}'), pr])
                    cur = None
            elif rs:
                s = rs[0]; singles.remove(s); emit(s[1]); cap -= 1
                if s[2] is not None: free_pairs.append(s[2])
            elif not pend and cur is None and not singles and tail:
                x = tail.pop(0); emit(x); cap -= max(x.cost, 1)
            else:
                break
    assert not pend and cur is None and not singles and not tail, (pend, cur, singles, tail)
    return out

def spread(n, lo, hi):
    return [lo + (i * (hi - lo)) // max(n - 1, 1) for i in range(n)]

def iteration(j_par, opt, do_a=True, first_pv=False, dmaK=True, dmaV=True, vm_b2=16, vm_b1=16, next_k=True, label=None):
    p = j_par; pn = 1 - p
    mf = (qk_list(opt) if do_a else []) + pv_list(opt, p, czero=first_pv)
    off = 64 if do_a else 0
    fixed = {}
    def add(g, x):
        fixed.setdefault(g, []).extend(x if isinstance(x, list) else [x])
    bg = opt.bar_gap
    if do_a:
        for grp in (1, 2, 3):
            kt, hh = grp // 2, grp % 2
            for s1 in range(4):
                add(16 * (grp - 1) + 1 + 2 * s1, rd_k(pn, kt, 4 * hh + s1))
        add(bg, [P(f's_waitcnt vmcnt({vm_b2}) lgkmcnt(0)'), P('s_barrier')])
        k = 0
        for dt in range(4):
            for t in range(2):
                add(bg + k, rd_v(p, dt, t)); k += 1
        if dmaV:
            gaps = opt.dmaV_gaps
            for i, g in enumerate(gaps):
                x = dma_v(pn, i)
                add(g - 1, x[0]); add(g, x[1])
            add(gaps[-1] + 1, [P(f's_add_u32 s{sVo}, s{sVo}, 16384')]); add(gaps[-1] + 2, [P(f's_add_u32 s{sVo+1}, s{sVo+1}, 16384')])
    else:
        pass
    tg = opt.t_gaps
    k = 0
    for dt in range(4, 16):
        for t in range(2):
            assert tg[k] >= 4 * (dt - 8) + 3 and tg[k] <= 4 * dt - 6
            add(off + tg[k], rd_v(p, dt, t)); k += 1
    if dmaK:
        gaps = opt.dmaK_gaps
        for i, g in enumerate(gaps):
            assert g not in tg
            x = dma_k(pn, i)
            add(off + g - 1, x[0]); add(off + g, x[1])
        add(off + gaps[-1] + 1, [P(f's_add_u32 s{sKo}, s{sKo}, 16384')]); add(off + gaps[-1] + 2, [P(f's_add_u32 s{sKo+1}, s{sKo+1}, 16384')])
    if next_k:
        add(off + bg, [P(f's_waitcnt vmcnt({vm_b1}) lgkmcnt(0)'), P('s_barrier')])
        for s1 in range(4):
            add(off + bg + 2 * s1, rd_k(p, 0, s1))
        if opt.pf:
            x = pf_ops()
            add(off + bg, x[0]); add(off + bg + 1, x[1]); add(off + bg + 2, x[2])
    groups = []; ready = {}; tail = []
    if do_a:
        groups = softmax_ops(pn)
        for kt in range(2):
            for qt in range(4):
                last = 32 * kt + 16 + (4 * qt + 3 if opt.chain else 12 + (3 - qt if opt.qsnake else qt))
                ready[(kt, qt)] = last
        tail = [P(f'v_max3_f32 v{vT}, v{L(pn,0)}, v{L(pn,1)}, v{L(pn,2)}'),
                P(f'v_max_f32 v{vT}, v{vT}, v{L(pn,3)}'),
                P(f'v_cmp_lt_f32 vcc, s{sThr}, v{vT}')]
    seq = schedule(mf, fixed, groups, ready, pn, opt, tail)
    if do_a:
        seq.append(P(f's_cbranch_vccnz L_slow_{label}'))
        seq.append(P(f'L_back_{label}:'))
    return seq

def rowmax_over_g(v, tmp):
    return [P(f'v_mov_b32 v{tmp}, v{v}'), P('s_nop 1'), P(f'v_permlane16_swap_b32 v{v}, v{tmp}'), P('s_nop 1'), P(f'v_max_f32 v{v}, v{v}, v{tmp}'),
            P(f'v_mov_b32 v{tmp}, v{v}'), P('s_nop 1'), P(f'v_permlane32_swap_b32 v{v}, v{tmp}'), P('s_nop 1'), P(f'v_max_f32 v{v}, v{v}, v{tmp}')]

def tile_max(qt, dst):
    a = S(0, qt); c = S(1, qt)
    return [P(f'v_max3_f32 v{dst}, v{a}, v{a+1}, v{a+2}'), P(f'v_max3_f32 v{dst}, v{dst}, v{a+3}, v{c}'),
            P(f'v_max3_f32 v{dst}, v{dst}, v{c+1}, v{c+2}'), P(f'v_max_f32 v{dst}, v{dst}, v{c+3}')]

def plain_softmax(b, qt, lsrc):
    o = []
    first = True
    for kt in range(2):
        for h in range(2):
            s = S(kt, qt) + 2 * h
            o += [P(f'v_exp_f32 v{vT}, v{s}'), P(f'v_exp_f32 v{vT+1}, v{s+1}'), P('s_nop 0'),
                  P(f'v_add_f32 v{L(b,qt)}, {lsrc if first else "v%d" % L(b,qt)}, v{vT}'),
                  P(f'v_add_f32 v{L(b,qt)}, v{L(b,qt)}, v{vT+1}'),
                  P(f'v_cvt_pk_bf16_f32 v{Pp(b,qt)+2*kt+h}, v{vT}, v{vT+1}')]
            first = False
    return o

def slow_path(b, label):
    o = [P(f'L_slow_{label}:'), P('s_nop 7'), P('s_nop 7')]
    d = vT + 2; al = vT + 3
    for qt in range(4):
        o += tile_max(qt, d) + rowmax_over_g(d, al)
        o += [P(f'v_add_f32 v{d}, s{sX}, v{d}'), P(f'v_max_f32 v{d}, 0, v{d}'), P(f'v_exp_f32 v{al}, -v{d}')]
        for r in range(4): o.append(P(f'v_sub_f32 v{NM(qt)+r}, v{NM(qt)+r}, v{d}'))
        for kt in range(2):
            for r in range(4): o.append(P(f'v_sub_f32 v{S(kt,qt)+r}, v{S(kt,qt)+r}, v{d}'))
        o.append(P(f'v_mul_f32 v{L(1-b,qt)}, v{L(1-b,qt)}, v{al}'))
        for dt in range(16):
            for r in range(0, 4, 2):
                a = O(dt, qt) + r
                o += [P(f'v_accvgpr_read_b32 v{vT}, a{a}'), P(f'v_accvgpr_read_b32 v{vT+1}, a{a+1}'),
                      P(f'v_mul_f32 v{vT}, v{vT}, v{al}'), P(f'v_mul_f32 v{vT+1}, v{vT+1}, v{al}'),
                      P(f'v_accvgpr_write_b32 a{a}, v{vT}'), P(f'v_accvgpr_write_b32 a{a+1}, v{vT+1}')]
        o += plain_softmax(b, qt, f'v{L(1-b,qt)}')
    o += [P('s_nop 1'), P(f's_branch L_back_{label}')]
    return o

def first_tile(opt):
    mf = qk_list(opt, czero=True)
    pre = [rd_k(0, 0, s) for s in range(4)]
    fixed = {}
    for grp in (1, 2, 3):
        kt, hh = grp // 2, grp % 2
        for s1 in range(4):
            fixed.setdefault(16 * (grp - 1) + 1 + 2 * s1, []).append(rd_k(0, kt, 4 * hh + s1))
    fixed.setdefault(opt.bar_gap, []).extend([P('s_waitcnt vmcnt(8) lgkmcnt(0)'), P('s_barrier')])
    for s1 in range(4):
        fixed.setdefault(opt.bar_gap + 2 * s1, []).append(rd_k(1, 0, s1))
    for i in range(8):
        x = dma_k(0, i); g = opt.bar_gap + 1 + i + (i > 3)
        fixed.setdefault(g - 1, []).append(x[0]); fixed.setdefault(g, []).append(x[1])
    seq = pre + schedule(mf, fixed, [], {}, 0, opt)
    seq += [P(f's_add_u32 s{sKo}, s{sKo}, 16384'), P(f's_add_u32 s{sKo+1}, s{sKo+1}, 16384'), P('s_nop 7')]
    d = vT + 2; al = vT + 3
    for qt in range(4):
        seq += tile_max(qt, d) + rowmax_over_g(d, al)
        seq += [P(f'v_add_f32 v{d}, s{sX}, v{d}')]
        for r in range(4): seq.append(P(f'v_sub_f32 v{NM(qt)+r}, 0, v{d}'))
        for kt in range(2):
            for r in range(4): seq.append(P(f'v_sub_f32 v{S(kt,qt)+r}, v{S(kt,qt)+r}, v{d}'))
        seq += plain_softmax(0, qt, '0')
    return seq
```

```python
from asmlib import *
import struct, math
def f32hex(x): return '0x%08x' % struct.unpack('<I', struct.pack('<f', x))[0]
A_X, A_K, A_V, A_WQ, A_WO, A_BX, A_WR, A_WG, A_WU, A_WD, A_C, A_WMOD, A_OUT, A_DBG, A_WS = [8 * i for i in range(15)]
WS_N = 0
WS_MOD = 0x200000
WS_PART = 0x400000
WS_CAND = 0x2400000
WS_H2 = 0x2410000
WS_X1 = 0x2490000
WS_Y = 0x2510000
WS_BYTES = 268435456
CSCALE = math.log2(math.e) / 16.0

class B:
    def __init__(self): self.l = []
    def __call__(self, t):
        for line in t.strip().split('\n'):
            line = line.strip()
            if line: self.l.append(P(line))
    def ext(self, x): self.l.extend(x)

def srd(b, d, base, off, nrec):
    if off == 0:
        b(f's_mov_b32 s{d}, s{base}\ns_mov_b32 s{d+1}, s{base+1}')
    else:
        b(f's_add_u32 s{d}, s{base}, {off}\ns_addc_u32 s{d+1}, s{base+1}, 0')
    b(f's_mov_b32 s{d+2}, {nrec}\ns_mov_b32 s{d+3}, 0x20000')

def bf16_round(b, v, tmp=None):
    b(f'v_cvt_pk_bf16_f32 v{v}, v{v}, v{v}\nv_and_b32 v{v}, 0xffff0000, v{v}')

def allreduce(b, regs, tmps, op='v_add_f32', steps=(1, 2, 4, 8, 16, 32)):
    dpp = {1: 'quad_perm:[1,0,3,2]', 2: 'quad_perm:[2,3,0,1]', 4: 'row_half_mirror', 8: 'row_mirror'}
    for st in steps:
        pad = max(0, 2 - (len(regs) - 1))
        if st in dpp:
            if st == 8 and 4 not in steps: d = 'row_ror:8'
            elif st == 4 and (1 not in steps or 2 not in steps): raise ValueError
            else: d = dpp[st]
            b('s_nop 1')
            for r in regs: b(f'{op}_dpp v{r}, v{r}, v{r} {d} row_mask:0xf bank_mask:0xf')
        else:
            for r, t in zip(regs, tmps): b(f'v_mov_b32 v{t}, v{r}')
            b('s_nop 1')
            for r, t in zip(regs, tmps): b(f'v_permlane{st}_swap_b32 v{r}, v{t}')
            b('s_nop 1')
            for r, t in zip(regs, tmps): b(f'{op} v{r}, v{r}, v{t}')

def kernel_text(name, seq, nv, acc, nsgpr=102):
    return f'.globl {name}\n.p2align 8\n.type {name},@function\n{name}:\n' + text(seq)
def kernel_desc(name, nv, acc, nsgpr=102):
    return f'''.amdhsa_kernel {name}
  .amdhsa_next_free_vgpr {nv}
  .amdhsa_next_free_sgpr {nsgpr}
  .amdhsa_accum_offset {acc}
  .amdhsa_group_segment_fixed_size 0
  .amdhsa_kernarg_size 120
  .amdhsa_user_sgpr_count 2
  .amdhsa_user_sgpr_kernarg_segment_ptr 1
  .amdhsa_system_sgpr_workgroup_id_x 1
.end_amdhsa_kernel
'''
```

```python
from common import *
NMOD = 42; NLN = 256
def k1():
    b = B()
    b(f'''s_cmp_ge_u32 s2, {NMOD + NLN}
    s_cbranch_scc1 K1_end
    s_load_dwordx2 s[4:5], s[0:1], {A_X}
    s_load_dwordx4 s[8:11], s[0:1], {A_C}
    s_load_dwordx2 s[6:7], s[0:1], {A_WS}
    v_and_b32 v1, 63, v0
    v_lshrrev_b32 v2, 6, v0
    s_cmp_ge_u32 s2, {NMOD}
    s_cbranch_scc1 K1_ln''')
    b('s_waitcnt lgkmcnt(0)')
    srd(b, 12, 8, 0, 896)
    b('s_lshl_b32 s3, s2, 7')
    srd(b, 16, 10, 's3', 448 * 5376)
    b(f's_sub_u32 s18, {448 * 5376}, s3')
    srd(b, 20, 6, WS_MOD, 16384)
    b('''v_and_b32 v3, 7, v0
    v_lshrrev_b32 v4, 3, v0
    v_mul_u32_u24 v5, 5376, v4
    v_lshl_add_u32 v5, v3, 4, v5
    v_lshlrev_b32 v6, 1, v0
    buffer_load_ushort v8, v6, s[12:15], 0 offen
    buffer_load_ushort v9, v6, s[12:15], 0 offen offset:512
    s_mov_b32 s24, 0''')
    for i in range(14):
        b(f'buffer_load_dwordx4 v[{16+4*i}:{19+4*i}], v5, s[16:19], s24 offen')
        if i < 13: b(f's_add_u32 s24, s24, {32 * 5376}')
    b('s_waitcnt vmcnt(14)')
    for r in (8, 9):
        b(f'''v_lshlrev_b32 v{r}, 16, v{r}
        v_mul_f32 v10, {f32hex(-math.log2(math.e))}, v{r}
        v_exp_f32 v10, v10
        s_nop 0
        v_add_f32 v10, 1.0, v10
        v_rcp_f32 v10, v10
        s_nop 0
        v_mul_f32 v{r}, v{r}, v10''')
        bf16_round(b, r)
    b('''v_lshlrev_b32 v6, 2, v0
    ds_write_b32 v6, v8
    ds_write_b32 v6, v9 offset:1024
    s_waitcnt lgkmcnt(0)
    s_barrier
    v_lshlrev_b32 v6, 2, v4''')
    for i in range(14): b(f'ds_read_b32 v{72+i}, v6 offset:{128*i}')
    for c in range(8): b(f'v_mov_b32 v{88+c}, 0')
    for i in range(14):
        b(f's_waitcnt vmcnt({13-i}) lgkmcnt({min(13-i, 15)})')
        for j in range(4):
            w = 16 + 4 * i + j
            b(f'''v_lshlrev_b32 v10, 16, v{w}
            v_and_b32 v11, 0xffff0000, v{w}
            v_fmac_f32 v{88+2*j}, v10, v{72+i}
            v_fmac_f32 v{89+2*j}, v11, v{72+i}''')
    allreduce(b, list(range(88, 96)), list(range(96, 104)), steps=(8, 16, 32))
    b('''s_barrier
    v_lshlrev_b32 v6, 5, v3
    v_lshl_add_u32 v6, v2, 8, v6
    v_cmp_gt_u32 vcc, 8, v1
    s_and_saveexec_b64 s[26:27], vcc
    ds_write_b128 v6, v[88:91]
    ds_write_b128 v6, v[92:95] offset:16
    s_mov_b64 exec, s[26:27]
    s_waitcnt lgkmcnt(0)
    s_barrier
    v_cmp_gt_u32 vcc, 64, v0
    s_and_saveexec_b64 s[26:27], vcc
    s_cbranch_execz K1_end
    v_lshlrev_b32 v6, 2, v0
    ds_read_b32 v8, v6
    ds_read_b32 v9, v6 offset:256
    ds_read_b32 v10, v6 offset:512
    ds_read_b32 v11, v6 offset:768''')
    b('''s_mul_i32 s28, s2, 37
    s_lshr_b32 s28, s28, 8
    s_mul_i32 s29, s28, 7
    s_sub_u32 s29, s2, s29
    s_lshl_b32 s29, s29, 6
    v_add_u32 v12, s29, v0
    s_waitcnt lgkmcnt(0)
    v_add_f32 v8, v8, v9
    v_add_f32 v10, v10, v11
    v_add_f32 v8, v8, v10''')
    bf16_round(b, 8)
    b('''s_cmp_eq_u32 s28, 1
    s_cselect_b32 s30, 1, 0
    s_cmp_eq_u32 s28, 4
    s_cselect_b32 s30, 1, s30
    s_cmp_eq_u32 s30, 0
    s_cbranch_scc1 K1_no1
    v_add_f32 v8, 1.0, v8''')
    bf16_round(b, 8)
    b(f'''K1_no1:
    s_cmp_ge_u32 s28, 2
    s_cbranch_scc1 K1_plain
    v_mul_f32 v8, {f32hex(CSCALE)}, v8
    v_lshrrev_b32 v13, 3, v12
    v_and_b32 v14, 7, v12
    v_lshlrev_b32 v14, 2, v14
    v_lshl_add_u32 v13, v13, 6, v14
    s_xor_b32 s31, s28, 1
    s_lshl_b32 s31, s31, 5
    buffer_store_dword v8, v13, s[20:23], s31 offen
    s_endpgm
    K1_plain:
    s_lshl_b32 s31, s28, 11
    v_lshlrev_b32 v13, 2, v12
    buffer_store_dword v8, v13, s[20:23], s31 offen
    s_endpgm''')
    b(f'''K1_ln:
    s_sub_u32 s3, s2, {NMOD}
    s_mul_i32 s3, s3, {8 * 896}
    s_waitcnt lgkmcnt(0)''')
    srd(b, 12, 4, 's3', 8 * 896)
    b(f's_add_u32 s3, s3, {WS_N}')
    srd(b, 16, 6, 's3', 8 * 896)
    b('''v_mul_u32_u24 v3, 1792, v2
    v_lshl_add_u32 v3, v1, 4, v3
    v_cmp_gt_u32 vcc, 56, v1
    v_mov_b32 v4, 0x7fffffff
    s_nop 0
    v_cndmask_b32 v3, v4, v3, vcc
    buffer_load_dwordx4 v[8:11], v3, s[12:15], 0 offen
    buffer_load_dwordx4 v[12:15], v3, s[12:15], 0 offen offset:896''')
    for r in range(2):
        b(f's_waitcnt vmcnt({1-r})')
        x = 16 + 8 * r
        for j in range(4):
            b(f'v_lshlrev_b32 v{x+2*j}, 16, v{8+4*r+j}\nv_and_b32 v{x+2*j+1}, 0xffff0000, v{8+4*r+j}')
        b(f'v_add_f32 v{32+2*r}, v{x}, v{x+1}\nv_mul_f32 v{33+2*r}, v{x}, v{x}\nv_fmac_f32 v{33+2*r}, v{x+1}, v{x+1}')
        for j in range(2, 8):
            b(f'v_add_f32 v{32+2*r}, v{32+2*r}, v{x+j}\nv_fmac_f32 v{33+2*r}, v{x+j}, v{x+j}')
    allreduce(b, [32, 33, 34, 35], [36, 37, 38, 39])
    for r in range(2):
        ln_finish(b, 32 + 2 * r, 33 + 2 * r, 36 + r)
        x = 16 + 8 * r
        for j in range(8):
            b(f'v_sub_f32 v{x+j}, v{x+j}, v{32+2*r}')
        for j in range(0, 8, 2):
            b(f'''v_cvt_pk_bf16_f32 v40, v{x+j}, v{x+j+1}
            v_lshlrev_b32 v41, 16, v40
            v_and_b32 v40, 0xffff0000, v40
            v_mul_f32 v41, v41, v{36+r}
            v_mul_f32 v40, v40, v{36+r}
            v_cvt_pk_bf16_f32 v40, v41, v40
            v_lshlrev_b32 v41, 16, v40
            v_and_b32 v40, 0xffff0000, v40
            v_cvt_pkrtz_f16_f32 v{8+4*r+j//2}, v41, v40''')
        b(f'buffer_store_dwordx4 v[{8+4*r}:{11+4*r}], v3, s[16:19], 0 offen offset:{896*r}')
    b('K1_end:\ns_endpgm')
    return b.l

def ln_finish(b, vs, vq, vr):
    b(f'''v_mul_f32 v{vs}, {f32hex(1/448)}, v{vs}
    v_mul_f32 v{vq}, {f32hex(1/448)}, v{vq}
    v_fma_f32 v{vq}, -v{vs}, v{vs}, v{vq}
    v_max_f32 v{vq}, 0, v{vq}''')
    bf16_round(b, vs); bf16_round(b, vq)
    b(f'v_add_f32 v{vq}, {f32hex(1e-5)}, v{vq}')
    bf16_round(b, vq)
    b(f'v_sqrt_f32 v{vq}, v{vq}\ns_nop 0')
    bf16_round(b, vq)
    b(f'v_rcp_f32 v{vr}, v{vq}\ns_nop 0')
if __name__ == '__main__':
    s = k1()
    for p in check_hazards(s, 'k1'): print(p)
```

```python
from common import *
import attn
from attn import *

SLOT8 = 8 * TILE + 256
CONST = SLOT8 + TILE
LDS2 = 163840
def slotaddr(k): return k * TILE if k < 8 else SLOT8
WSLOT = [2, 6, 3, 7, 8, 0, 4, 1, 5, 2, 6, 3, 7, 8]
sW = 4
sN = 36; sPart = 40
sWave, sHead, sQb, sKh, sQg = 27, 28, 29, 30, 31
sWb = 70; sSo = 71; sQ1 = 72; sReg = 73; sSt = 74
sXb1 = 76; sXb2 = 77
qC = 0; qF = 16; qT = 48; qWE = 52; qWO = 53; qCA = 54; qNO = 55; qDW = 56; qDK = 57; qH = 64; qACC = 128
def tagged(x, tag):
    x.meta['tag'] = tag; return x

def gemm_stream(nfr, rd, mf, fillers, pre, lead=6):
    out = []
    for f in range(lead):
        out += pre.get(2 * (f - lead), []) + [rd(f)[0]] + pre.get(2 * (f - lead) + 1, []) + [rd(f)[1]]
    for f in range(nfr):
        m = mf(f)
        for k in range(2):
            g = 2 * f + k
            out.append(m[k])
            out += pre.get(g, [])
            if f + lead < nfr: out.append(rd(f + lead)[k])
            out += fillers.get(g, [])
    return out

def distribute(dst, items, g0, g1):
    tot = sum(sum(x.cost for x in it) for it in items)
    acc = 0
    for it in items:
        g = g0 + int(acc * (g1 - g0) / max(tot, 1))
        dst.setdefault(min(g, g1 - 1), []).extend(it)
        acc += sum(x.cost for x in it)

def dma_w(s, i):
    so = s * 262144 + (0, 16384, 65536, 81920)[i]
    return ([P(f's_add_u32 m0, s{sWb}, {slotaddr(WSLOT[s]) + i * PIECE}'), P(f's_mov_b32 s{sSo}, {so}')],
            tagged(P(f'buffer_load_dwordx4 v{qDW}, s[{sW}:{sW+3}], s{sSo} offen lds'), ('W', s)))
def ld_n(s):
    h = qH + 8 * (s % 8)
    return [P(f'buffer_load_dwordx4 v[{h}:{h+3}], v{qNO}, s[{sN}:{sN+3}], 0 offen offset:{64*s}'),
            P(f'buffer_load_dwordx4 v[{h+4}:{h+7}], v{qNO}, s[{sN}:{sN+3}], s{sQ1} offen offset:{64*s}')]
def rd_c(s, half):
    return [P(f'ds_read_b128 v[{qC+4*half}:{qC+4*half+3}], v{qCA} offset:{256*s+16*half}'),
            P(f'ds_read_b128 v[{qC+8+4*half}:{qC+8+4*half+3}], v{qCA} offset:{256*s+32+16*half}')]
def modulate(s, half):
    o = []; k = 0
    for j in (2 * half, 2 * half + 1):
        for qt in range(2):
            h = qH + 8 * (s % 8) + 4 * qt + j; t = qT + 2 * (k % 2); k += 1
            o += [P(f'v_fma_mix_f32 v{t}, v{h}, v{qC+2*j}, v{qC+8+2*j} op_sel_hi:[1,0,0]'),
                  P(f'v_fma_mix_f32 v{t+1}, v{h}, v{qC+2*j+1}, v{qC+8+2*j+1} op_sel:[1,0,0] op_sel_hi:[1,0,0]'),
                  P(f'v_cvt_pk_bf16_f32 v{h}, v{t}, v{t+1}')]
    return o
def kv_dma(fn, slot, i, tag, vreg):
    x = fn(slot, i)
    return [x[0]], tagged(P(x[1].text.replace(f'v{vDM},', f'v{vreg},')), tag)

def prologue(opt):
    b = B()
    b(f'''s_cmp_ge_u32 s2, 256
    s_cbranch_scc1 K2_end
    s_load_dwordx8 s[48:55], s[0:1], {A_K}
    s_load_dwordx2 s[56:57], s[0:1], {A_WS}''')
    if opt.stamp: b('s_memtime s[80:81]\ns_memrealtime s[82:83]')
    b(f'''v_lshrrev_b32 v1, 6, v0
    v_and_b32 v2, 63, v0
    s_and_b32 s{sHead}, s2, 7
    v_readfirstlane_b32 s{sWave}, v1
    s_lshr_b32 s{sQb}, s2, 3
    s_lshr_b32 s32, s{sQb}, 4
    s_lshl_b32 s{sHead}, s{sHead}, 1
    s_add_u32 s{sHead}, s{sHead}, s32
    s_and_b32 s{sQb}, s{sQb}, 15
    s_lshr_b32 s{sKh}, s{sWave}, 1
    s_and_b32 s{sQg}, s{sWave}, 1
    v_lshrrev_b32 v3, 5, v2
    v_and_b32 v4, 31, v2
    v_lshlrev_b32 v5, 1, v3
    v_xor_b32 v4, v4, v5
    v_lshlrev_b32 v4, 4, v4
    v_lshl_add_u32 v{qDK}, v3, 9, v4
    v_lshl_add_u32 v{qDW}, v3, 13, v4
    v_and_b32 v3, 15, v2
    v_lshrrev_b32 v4, 4, v2
    v_mul_u32_u24 v5, 896, v3
    v_lshl_add_u32 v{qNO}, v4, 4, v5
    v_lshlrev_b32 v6, 4, v0
    s_lshl_b32 s32, s{sWave}, 10
    s_add_u32 m0, s32, {CONST}
    s_lshl_b32 s32, s{sQb}, 7
    s_lshl_b32 s33, s{sQg}, 6
    s_add_u32 s32, s32, s33
    s_lshl_b32 s33, s{sKh}, 5
    s_add_u32 s32, s32, s33
    s_mul_i32 s33, s32, 896
    s_add_u32 s33, s33, {WS_N}
    s_mov_b32 s{sQ1}, {16*896}
    s_waitcnt lgkmcnt(0)''')
    srd(b, sPart, 56, WS_MOD, 3584)
    b.ext([tagged(P(f'buffer_load_dwordx4 v6, s[{sPart}:{sPart+3}], 0 offen lds'), 'C')])
    srd(b, sN, 56, 's33', 32 * 896)
    b(f'''s_lshr_b32 s34, s32, 3
    s_mul_i32 s34, s34, 114688
    s_mul_i32 s35, s{sHead}, 7168
    s_add_u32 s34, s34, s35
    s_add_u32 s34, s34, {WS_PART}
    s_lshl_b32 s32, s{sHead}, 9
    s_lshl_b32 s33, s{sKh}, 17
    s_add_u32 s32, s32, s33
    s_lshl_b32 s33, s{sQg}, 15
    s_add_u32 s32, s32, s33
    s_sub_u32 s33, {448*8192}, s32
    s_mul_i32 s{sWb}, s{sWave}, {4*PIECE}''')
    srd(b, sW, 52, 's32', 's33')
    def wtile(s):
        for i in range(4):
            sa, d = dma_w(s, i); b.ext(sa + [d])
    b.ext(ld_n(0)); wtile(0); b.ext(ld_n(1)); wtile(1)
    srd(b, sPart, 56, 's34', 3 * 114688 + 7168)
    for s in range(2, 7):
        b.ext(ld_n(s)); wtile(s)
    b.ext(ld_n(7))
    b(f'''s_lshl_b32 s32, s{sHead}, 20
    s_lshl_b32 s33, s{sKh}, 19
    s_add_u32 s32, s32, s33
    s_lshl_b32 s33, s{sQg}, 13
    s_add_u32 s33, s32, s33
    s_sub_u32 s34, 0x1000000, s33''')
    srd(b, sK, 48, 's33', 's34'); srd(b, sV, 50, 's33', 's34')
    b(f'''s_lshl_b32 s33, s{sQb}, 10
    s_add_u32 s33, s32, s33
    s_cmp_eq_u32 s{sQg}, 0
    s_cselect_b32 s58, s48, s50
    s_cselect_b32 s59, s49, s51''')
    srd(b, sPF, 58, 's33', 512 * 1024 - 15 * 1024)
    b(f's_mov_b32 s{sPFo}, 0')
    for i in range(opt.pf0):
        x = pf_ops(); b.ext([x[0], P('s_nop 0'), P(x[1].text.replace(f'v{vDM},', f'v{qDK},')), x[2]])
    b(f'''s_mul_i32 s{sReg}, s{sKh}, {4*TILE}
    s_mul_i32 s34, s{sQg}, {HALF}
    s_add_u32 s34, s34, s{sReg}''')
    for i in range(4): b(f's_add_u32 s{sLB+i}, s34, {i*TILE}')
    b(f'''s_mov_b32 s{sKo}, 0
    s_mov_b32 s{sKo+1}, 4096
    s_mov_b32 s{sVo}, 0
    s_mov_b32 s{sVo+1}, 4096
    s_mov_b32 s{sThr}, {f32hex(2.0 ** (opt.T - opt.X))}
    s_mov_b32 s{sX}, {f32hex(opt.X)}''')
    b(f'''v_lshrrev_b32 v5, 1, v4
    v_and_b32 v6, 1, v4
    v_lshlrev_b32 v6, 2, v6
    v_lshl_add_u32 v5, v5, 4, v6
    v_bfe_u32 v6, v2, 2, 2
    v_add_u32 v5, v5, v6
    v_and_b32 v6, 1, v5
    v_lshrrev_b32 v5, 1, v5
    v_mul_u32_u24 v5, {PIECE}, v5
    v_lshl_add_u32 v5, v6, 9, v5
    v_and_b32 v7, 3, v2
    v_lshl_add_u32 v5, v7, 3, v5
    v_add_u32 v5, {slotaddr(WSLOT[0])}, v5
    v_lshl_add_u32 v{qWE}, v6, 5, v5
    v_xor_b32 v6, 1, v6
    v_lshl_add_u32 v{qWO}, v6, 5, v5
    v_lshlrev_b32 v5, 6, v4
    v_add_u32 v{qCA}, {CONST}, v5''')
    return b.l

def qproj(opt):
    def rd(f):
        s, dt = divmod(f, 16); r = qF + 4 * (f % 8); a = qWO if dt % 2 else qWE
        return [P(f'ds_read_b64_tr_b16 v[{r+2*t}:{r+2*t+1}], v{a} offset:{t*4*PIECE + (dt & ~1)*32}') for t in range(2)]
    def mf(f):
        s, dt = divmod(f, 16); r = qF + 4 * (f % 8); o = []
        for qt in ((0, 1) if dt % 2 == 0 else (1, 0)):
            d = R('v', qACC + 4 * (dt * 2 + qt), 4); h = qH + 8 * (s % 8) + 4 * qt
            o.append(P(f'{MF} {d}, {R("v", r, 4)}, {R("v", h, 4)}, {"0" if s == 0 else d}'))
        return o
    lead = 6
    head = [WT('C'), P('s_barrier')] + rd_c(0, 0) + rd_c(0, 1) + modulate(0, 0) + rd_c(1, 0) + modulate(0, 1) + rd_c(1, 1)
    pre = {-2 * lead: [WT(('W', 0)), P('s_barrier')]}
    fil = {}
    for s in range(14):
        g0 = 32 * s
        if s < 13:
            dl = (slotaddr(WSLOT[s + 1]) - slotaddr(WSLOT[s])) & 0xffffffff
            pre[g0 + 32 - 2 * lead] = [WT(('W', s + 1)), P('s_barrier'), P(f'v_add_u32 v{qWE}, {dl}, v{qWE}'), P(f'v_add_u32 v{qWO}, {dl}, v{qWO}')]
        else:
            pre[g0 + 20] = [P('s_barrier')]
        vm = []
        if 1 <= s <= 6: vm += [([], x) for x in ld_n(s + 7)]
        if s <= 6: vm += [dma_w(s + 7, i) for i in range(4)]
        if s in (8, 9): vm += [kv_dma(dma_k, 0, 4 * (s - 8) + i, ('K', 0), qDK) for i in range(4)]
        if s in (10, 11): vm += [kv_dma(dma_k, 1, 4 * (s - 10) + i, ('K', 1), qDK) for i in range(4)]
        va = []
        if s < 13:
            va += [[x] for x in modulate(s + 1, 0)]
            if s < 12: va += [[x] for x in rd_c(s + 2, 0)]
            va += [[x] for x in modulate(s + 1, 1)]
            if s < 12: va += [[x] for x in rd_c(s + 2, 1)]
        distribute(fil, va, g0 + 1, g0 + 31)
        for k, (sa, d) in enumerate(vm):
            g = g0 + 2 + 5 * k
            fil.setdefault(g - 1, []).extend(sa); fil.setdefault(g, []).append(d)
        if s in (9, 11):
            fil.setdefault(g0 + 30, []).extend([P(f's_add_u32 s{sKo}, s{sKo}, 16384'), P(f's_add_u32 s{sKo+1}, s{sKo+1}, 16384')])
    return head + gemm_stream(224, rd, mf, fil, pre, lead)

def q_finish(opt):
    b = B()
    b(f'''v_mbcnt_lo_u32_b32 v64, -1, 0
    v_mbcnt_hi_u32_b32 v64, -1, v64
    s_mul_i32 s32, s{sQg}, {TILE}
    s_add_u32 s32, s32, {2*TILE}
    s_add_u32 s33, s32, s{sReg}
    s_xor_b32 s34, s{sKh}, 1
    s_mul_i32 s34, s34, {4*TILE}
    s_add_u32 s34, s34, s32
    v_lshlrev_b32 v65, 4, v64
    v_add_u32 v66, s34, v65
    v_add_u32 v65, s33, v65
    v_mov_b32 v67, v{qDK}''')
    for u in range(8):
        for qt in range(2):
            q = Q(qt, u); a0 = qACC + 4 * (4 * u + qt); a1 = a0 + 8
            b(f'''v_cvt_pk_bf16_f32 v{q}, v{a0}, v{a0+1}
            v_cvt_pk_bf16_f32 v{q+1}, v{a0+2}, v{a0+3}
            v_cvt_pk_bf16_f32 v{q+2}, v{a1}, v{a1+1}
            v_cvt_pk_bf16_f32 v{q+3}, v{a1+2}, v{a1+3}''')
        for sw in (32, 16):
            for qt in range(2):
                q = Q(qt, u)
                b(f'v_permlane{sw}_swap_b32 v{q}, v{q+2}\nv_permlane{sw}_swap_b32 v{q+1}, v{q+3}')
        for qt in range(2):
            b(f'ds_write_b128 v65, {R("v", Q(qt, u), 4)} offset:{(qt*8+u)*1024}')
    b(f'''v_mov_b32 v{vDM}, v67
    v_and_b32 v68, 15, v64
    v_lshrrev_b32 v69, 4, v64
    v_lshrrev_b32 v70, 1, v68
    v_mul_u32_u24 v70, {PIECE}, v70
    v_and_b32 v71, 1, v68
    v_lshl_add_u32 v70, v71, 9, v70
    v_lshlrev_b32 v72, 1, v71
    v_xor_b32 v72, v72, v69
    v_lshl_add_u32 v70, v72, 4, v70
    v_add_u32 v{vKA}, s{sReg}, v70
    v_lshrrev_b32 v70, 2, v68
    v_lshl_add_u32 v70, v69, 2, v70
    v_and_b32 v71, 1, v70
    v_lshrrev_b32 v70, 1, v70
    v_mul_u32_u24 v70, {PIECE}, v70
    v_lshl_add_u32 v70, v71, 9, v70
    v_and_b32 v72, 3, v64
    v_lshl_add_u32 v70, v72, 3, v70
    v_add_u32 v70, {2*TILE}, v70
    v_add_u32 v70, s{sReg}, v70
    v_lshl_add_u32 v{vVE}, v71, 5, v70
    v_xor_b32 v71, 1, v71
    v_lshl_add_u32 v{vVO}, v71, 5, v70
    v_mov_b32 v{vT}, v66''')
    b.ext([WT(('K', 0), lgkm0=True), P('s_barrier')])
    b.ext([rd_k(0, 0, s) for s in range(4)])
    for qt in range(2):
        for u in range(8):
            b(f'ds_read_b128 {R("v", Q(2+qt, u), 4)}, v{vT} offset:{(qt*8+u)*1024}')
    return b.l

def first_tile2(opt):
    mf = qk_list(opt, czero=True)
    fixed = {}
    def add(g, x): fixed.setdefault(g, []).extend(x if isinstance(x, list) else [x])
    for grp in (1, 2, 3):
        kt, hh = grp // 2, grp % 2
        for s1 in range(4): add(16 * (grp - 1) + 1 + 2 * s1, rd_k(0, kt, 4 * hh + s1))
    add(16, [P('s_waitcnt lgkmcnt(0)'), P('s_barrier')])
    for i in range(8):
        x = dma_v(0, i); g = 18 + 4 * i
        add(g - 1, x[0]); add(g, tagged(x[1], ('V', 0)))
    add(48, [P(f's_add_u32 s{sVo}, s{sVo}, 16384'), P(f's_add_u32 s{sVo+1}, s{sVo+1}, 16384')])
    bg = opt.bar_gap
    add(bg, [WT(('K', 1), lgkm0=True), P('s_barrier')])
    for s1 in range(4): add(bg + 2 * s1, rd_k(1, 0, s1))
    for i in range(8):
        x = dma_k(0, i); g = bg + 1 + i + (i > 3)
        add(g - 1, x[0]); add(g, tagged(x[1], ('K', 2)))
    seq = schedule(mf, fixed, [], {}, 0, opt)
    seq += [P(f's_add_u32 s{sKo}, s{sKo}, 16384'), P(f's_add_u32 s{sKo+1}, s{sKo+1}, 16384'), P('s_nop 7')]
    d = vT + 2; al = vT + 3
    for qt in range(4):
        seq += tile_max(qt, d) + rowmax_over_g(d, al)
        seq += [P(f'v_add_f32 v{d}, s{sX}, v{d}')]
        for r in range(4): seq.append(P(f'v_sub_f32 v{NM(qt)+r}, 0, v{d}'))
        for kt in range(2):
            for r in range(4): seq.append(P(f'v_sub_f32 v{S(kt,qt)+r}, v{S(kt,qt)+r}, v{d}'))
        seq += plain_softmax(0, qt, '0')
    return seq

eX = 0; eOB = 128; eF = 192; eACC = 0; eST = 32; eA0 = 240; eA1 = 241; eDO = 242; eSO = 243; eXW = vKA; eXW2 = vDM
eSC = 232
XLM = CONST
def wo_slot(g): return SLOT8 if g == 0 else ((g - 1) % 8) * 16384
def dma_wo(g, i, vreg):
    return ([P(f's_add_u32 m0, s{sWb}, {wo_slot(g) + i * 1024}'), P(f's_mov_b32 s{sSo}, {g * 64 + i * 14336}')],
            tagged(P(f'buffer_load_dwordx4 v{vreg}, s[{sW}:{sW+3}], s{sSo} offen lds'), ('O', g)))

def iteration2(j, opt):
    p = j % 2; pn = 1 - p
    do_a = j <= 30
    label = {0: 'p0', 29: 'p29', 30: 'p30'}.get(j, 'a' if p else 'b')
    mf = (qk_list(opt) if do_a else []) + pv_list(opt, p, czero=(j == 0))
    off = 64 if do_a else 0
    fixed = {}
    def add(g, x): fixed.setdefault(g, []).extend(x if isinstance(x, list) else [x])
    bg = opt.bar_gap
    if do_a:
        for grp in (1, 2, 3):
            kt, hh = grp // 2, grp % 2
            for s1 in range(4): add(16 * (grp - 1) + 1 + 2 * s1, rd_k(pn, kt, 4 * hh + s1))
        add(bg, [WT(('V', j), lgkm0=True), P('s_barrier')])
        for k in range(8): add(bg + k, rd_v(p, k // 2, k % 2))
        gaps = opt.dmaV_gaps
        for i, g in enumerate(gaps):
            x = dma_v(pn, i); add(g - 1, x[0]); add(g, tagged(x[1], ('V', j + 1)))
        add(gaps[-1] + 1, P(f's_add_u32 s{sVo}, s{sVo}, 16384')); add(gaps[-1] + 2, P(f's_add_u32 s{sVo+1}, s{sVo+1}, 16384'))
    tg = opt.t_gaps
    for k in range(24):
        dt = 4 + k // 2
        add(off + tg[k], rd_v(p, dt, k % 2))
    if j <= 28:
        gaps = opt.dmaK_gaps
        for i, g in enumerate(gaps):
            x = dma_k(pn, i); add(off + g - 1, x[0]); add(off + g, tagged(x[1], ('K', j + 3)))
        add(off + gaps[-1] + 1, P(f's_add_u32 s{sKo}, s{sKo}, 16384')); add(off + gaps[-1] + 2, P(f's_add_u32 s{sKo+1}, s{sKo+1}, 16384'))
    if j <= 29:
        add(off + bg, [WT(('K', j + 2), lgkm0=True), P('s_barrier')])
        for s1 in range(4): add(off + bg + 2 * s1, rd_k(p, 0, s1))
    if j <= 28 and opt.pf:
        x = pf_ops(); add(off + bg, x[0]); add(off + bg + 1, x[1]); add(off + bg + 2, x[2])
    if j == 30:
        add(off + bg, [WT(('V', 31), lgkm0=True), P('s_barrier')])
        for k in range(8): add(off + bg + k, rd_v(1, k // 2, k % 2))
    tail = []; groups = []; ready = {}
    if do_a:
        groups = softmax_ops(pn)
        for kt in range(2):
            for qt in range(4): ready[(kt, qt)] = 32 * kt + 16 + 4 * qt + 3
        tail = [P(f'v_max3_f32 v{vT}, v{L(pn,0)}, v{L(pn,1)}, v{L(pn,2)}'), P(f'v_max_f32 v{vT}, v{vT}, v{L(pn,3)}'),
                P(f'v_cmp_lt_f32 vcc, s{sThr}, v{vT}')]
    if j == 31:
        last_tile_extras(add, opt)
    seq = schedule(mf, fixed, groups, ready, pn, opt, tail)
    if do_a: seq += [P(f's_cbranch_vccnz L_slow_{label}'), P(f'L_back_{label}:')]
    return seq

def last_tile_extras(add, opt):
    ln = 0; t0 = 1; t1 = 2; t2 = 3
    st = [f'v_mbcnt_lo_u32_b32 v{ln}, -1, 0', f'v_mbcnt_hi_u32_b32 v{ln}, -1, v{ln}',
          f'v_lshrrev_b32 v{t0}, 2, v{ln}', f'v_mul_u32_u24 v{t0}, 896, v{t0}', f'v_bfe_u32 v{t1}, v{ln}, 4, 1',
          f'v_lshlrev_b32 v{t1}, 1, v{t1}', f'v_and_b32 v{t2}, 3, v{ln}', f'v_xor_b32 v{t1}, v{t1}, v{t2}',
          f'v_lshl_add_u32 v4, v{t1}, 4, v{t0}',
          f'v_lshlrev_b32 v{t0}, 4, v{ln}', f'v_add_u32 v{eXW}, s{sXb1}, v{t0}', f'v_add_u32 v{eXW2}, s{sXb2}, v{t0}']
    sal = [f's_mul_i32 s32, s{sHead}, {256*896}', f's_mul_i32 s33, s{sWave}, {4*14336}', 's_add_u32 s32, s32, s33',
           f's_sub_u32 s33, {4096*896}, s32', f's_add_u32 s{sW}, s54, s32', f's_addc_u32 s{sW+1}, s55, 0', f's_mov_b32 s{sW+2}, s33',
           f's_lshl_b32 s{sWb}, s{sWave}, 12',
           f's_mul_i32 s32, s{sQg}, 24576', f's_add_u32 s{sXb1}, s32, s{sReg}',
           f's_lshl_b32 s32, s{sQg}, 13', f's_add_u32 s32, s32, {3*TILE}', f's_add_u32 s{sXb2}, s32, s{sReg}']
    add(0, [P(x) for x in sal])
    for k, x in enumerate(st): add(1 + k // 2 * 1, P(x))
    for i in range(4):
        sa, d = dma_wo(0, i, 4); g = (9, 12, 16, 19)[i]
        add(g - 1, sa); add(g, d)
    b = B()
    allreduce(b, [L(1, q) for q in range(4)], [8, 9, 10, 11], steps=(16, 32))
    b(f'''v_lshlrev_b32 v5, 3, v{ln}
    s_lshl_b32 s32, s{sWave}, 10
    s_add_u32 s32, s32, {XLM}
    v_add_u32 v5, s32, v5
    v_mov_b32 v8, v{L(1,2)}
    v_mov_b32 v9, v{NM(2)}
    v_mov_b32 v10, v{L(1,3)}
    v_mov_b32 v11, v{NM(3)}
    ds_write_b64 v5, v[8:9]
    ds_write_b64 v5, v[10:11] offset:512''')
    g = 8
    for x in b.l:
        add(g, x)
        if x.cost: g += 1
    for dt in range(16):
        for qt in (2, 3):
            a = eXW if dt < 12 else eXW2
            o = (dt if dt < 12 else dt - 12) * 2048 + (qt - 2) * 1024
            x = P(f'ds_write_b128 v{a}, {R("a", O(dt, qt), 4)} offset:{o}')
            g = 4 * dt + 8 + 2 * (qt - 2)
            if g <= 63: add(g, x)
            else: opt._late.append(x)
    add(opt.bar_gap + 2, [P('s_waitcnt lgkmcnt(0)'), P('s_barrier')])

def combine(opt):
    b = B()
    b('s_nop 7'); b.ext(opt._late)
    b(f'''s_xor_b32 s32, s{sWave}, 2
    s_lshl_b32 s32, s32, 10
    s_add_u32 s32, s32, {XLM}
    v_lshlrev_b32 v5, 3, v0
    v_add_u32 v5, s32, v5
    ds_read_b64 v[8:9], v5
    ds_read_b64 v[10:11], v5 offset:512
    s_xor_b32 s32, s{sKh}, 1
    s_mul_i32 s32, s32, {4*TILE}
    s_sub_u32 s32, s32, s{sReg}
    v_add_u32 v{eXW}, s32, v{eXW}
    v_add_u32 v{eXW2}, s32, v{eXW2}
    v_mov_b32 v{eDO}, v4
    v_and_b32 v1, 15, v0
    v_lshrrev_b32 v2, 4, v0
    v_lshrrev_b32 v3, 3, v1
    v_mul_u32_u24 v3, 114688, v3
    v_and_b32 v6, 7, v0
    v_lshl_add_u32 v3, v6, 6, v3
    v_lshl_add_u32 v{eSO}, v2, 4, v3
    v_lshrrev_b32 v3, 2, v0
    v_lshlrev_b32 v3, 6, v3
    v_and_b32 v6, 3, v0
    v_lshl_add_u32 v3, v6, 3, v3
    v_add_u32 v3, {wo_slot(0)}, v3
    v_and_b32 v6, 1, v2
    v_lshl_add_u32 v{eA0}, v6, 5, v3
    v_xor_b32 v6, 1, v6
    v_lshl_add_u32 v{eA1}, v6, 5, v3
    s_mov_b32 s{sSt}, 0
    s_mov_b32 s{sSt+1}, {2*114688}''')
    for qt in range(2):
        lo, nmo, lp, nmp = L(1, qt), NM(qt), 8 + 2 * qt, 9 + 2 * qt
        so, sp = eSC + qt, eSC + 2 + qt
        b(f'''v_min_f32 v12, v{nmo}, v{nmp}
        v_sub_f32 v{so}, v12, v{nmo}
        v_sub_f32 v{sp}, v12, v{nmp}
        v_exp_f32 v{so}, v{so}
        v_exp_f32 v{sp}, v{sp}
        s_nop 0
        v_mul_f32 v12, v{lo}, v{so}
        v_fmac_f32 v12, v{lp}, v{sp}
        v_rcp_f32 v12, v12
        s_nop 0
        v_mul_f32 v{so}, v{so}, v12
        v_mul_f32 v{sp}, v{sp}, v12''')
    b('s_waitcnt lgkmcnt(0)\ns_barrier')
    for dt in range(16):
        for qt in range(2):
            a = eXW if dt < 12 else eXW2
            o = (dt if dt < 12 else dt - 12) * 2048 + qt * 1024
            b(f'ds_read_b128 {R("v", eX + 4*(dt*2+qt), 4)}, v{a} offset:{o}')
    b('s_waitcnt lgkmcnt(0)\ns_barrier')
    dm = [dma_wo(g, i, eDO) for g in range(1, 9) for i in range(4)]
    k = 0
    t = 236
    for dt in range(16):
        for qt in range(2):
            x = eX + 4 * (dt * 2 + qt); a = O(dt, qt); ob = eOB + 4 * (qt * 8 + dt // 2) + 2 * (dt % 2)
            sa, d = dm[k]; k += 1
            b.ext(sa)
            for r in range(4): b(f'v_accvgpr_read_b32 v{t+r}, a{a+r}')
            b.ext([d])
            b(f'''v_pk_mul_f32 v[{x}:{x+1}], v[{x}:{x+1}], v[{eSC+2}:{eSC+3}] op_sel:[0,{qt}] op_sel_hi:[1,{qt}]
            v_pk_mul_f32 v[{x+2}:{x+3}], v[{x+2}:{x+3}], v[{eSC+2}:{eSC+3}] op_sel:[0,{qt}] op_sel_hi:[1,{qt}]
            v_pk_fma_f32 v[{x}:{x+1}], v[{t}:{t+1}], v[{eSC}:{eSC+1}], v[{x}:{x+1}] op_sel:[0,{qt},0] op_sel_hi:[1,{qt},1]
            v_pk_fma_f32 v[{x+2}:{x+3}], v[{t+2}:{t+3}], v[{eSC}:{eSC+1}], v[{x+2}:{x+3}] op_sel:[0,{qt},0] op_sel_hi:[1,{qt},1]
            v_cvt_pk_bf16_f32 v{ob}, v{x}, v{x+1}
            v_cvt_pk_bf16_f32 v{ob+1}, v{x+2}, v{x+3}''')
    return b.l

def oproj(opt):
    def rd(f):
        g, k = divmod(f, 16); s, nt = divmod(k, 2); r = eF + 4 * (f % 8); a = eA1 if nt else eA0
        return [P(f'ds_read_b64_tr_b16 v[{r+2*t}:{r+2*t+1}], v{a} offset:{s*2048 + t*1024}') for t in range(2)]
    def acc(g, nt, qt): return eACC + 16 * (g % 2) + 4 * (nt * 2 + qt)
    def mf(f):
        g, k = divmod(f, 16); s, nt = divmod(k, 2); r = eF + 4 * (f % 8); o = []
        for qt in ((0, 1) if nt == 0 else (1, 0)):
            d = R('v', acc(g, nt, qt), 4)
            o.append(P(f'{MF} {d}, {R("v", r, 4)}, {R("v", eOB + 4*(qt*8+s), 4)}, {"0" if s == 0 else d}'))
        return o
    def finish(g):
        o = []
        for qt in range(2):
            st = eST + 8 * (g % 2) + 4 * qt
            for nt in range(2):
                a = acc(g, nt, qt)
                o += [[P(f'v_cvt_pk_bf16_f32 v{st+2*nt}, v{a}, v{a+1}')], [P(f'v_cvt_pk_bf16_f32 v{st+2*nt+1}, v{a+2}, v{a+3}')]]
            o.append([P(f'buffer_store_dwordx4 v[{st}:{st+3}], v{eSO}, s[{sPart}:{sPart+3}], s{sSt+qt} offen{opt.stflags}'),
                      P(f's_add_u32 s{sSt+qt}, s{sSt+qt}, 512')])
        return o
    lead = 6
    pre = {-2 * lead: [WT(('O', 0)), P('s_barrier')]}
    fil = {}
    for g in range(14):
        g0 = 32 * g
        if g < 13:
            dl = (wo_slot(g + 1) - wo_slot(g)) & 0xffffffff
            x = [P(f'v_add_u32 v{eA0}, {dl}, v{eA0}'), P(f'v_add_u32 v{eA1}, {dl}, v{eA1}')]
            if g % 2 == 0: x = [WT(('O', min(g + 2, 13))), P('s_barrier')] + x
            pre[g0 + 32 - 2 * lead] = x
        if g >= 1: distribute(fil, finish(g - 1), g0 + 4, g0 + 20)
        hs = [g + 5, g + 6] if (g % 2 == 1) else []
        vm = [dma_wo(h, i, eDO) for h in hs if 9 <= h <= 13 for i in range(4)]
        for k, (sa, d) in enumerate(vm):
            gg = g0 + 2 + 4 * k
            fil.setdefault(gg - 1, []).extend(sa); fil.setdefault(gg, []).append(d)
    seq = gemm_stream(224, rd, mf, fil, pre, lead)
    seq.append(P('s_nop 7'))
    for it in finish(13): seq += it
    return seq

class Opt2(Opt):
    X = 102.0; T = 90.0; pf = 1; pf0 = 6; stamp = False; stflags = ' sc1'

def k2(opt=None):
    opt = opt or Opt2()
    opt._late = []
    M = lambda n: I('; ' + n, 'mark', cost=0, name=n)
    def stamp(k): return [P(f's_memtime s[{80+4*k}:{81+4*k}]'), P(f's_memrealtime s[{82+4*k}:{83+4*k}]'), P('s_waitcnt lgkmcnt(0)')] if opt.stamp else []
    tr = prologue(opt) + qproj(opt) + [P('s_nop 7')] + stamp(1) + q_finish(opt) + first_tile2(opt) + stamp(2)
    for j in range(32):
        tr += [M(f'it{j}')] + iteration2(j, opt)
    tr += [M('it32')] + stamp(3) + combine(opt) + oproj(opt)
    if opt.stamp:
        b = B()
        b('s_waitcnt vmcnt(0)\ns_memtime s[96:97]\ns_memrealtime s[98:99]\ns_waitcnt lgkmcnt(0)')
        b(f's_lshl_b32 s32, s2, 2\ns_add_u32 s32, s32, s{sWave}\ns_lshl_b32 s32, s32, 7\ns_add_u32 s32, s32, 0x3000000')
        srd(b, sW, 56, 's32', 128)
        for i in range(20): b(f'v_mov_b32 v{4+i}, s{80+i}')
        b('v_mov_b32 v2, 0\ns_mov_b64 exec, 1')
        for i in range(5): b(f'buffer_store_dwordx4 v[{4+4*i}:{7+4*i}], v2, s[{sW}:{sW+3}], 0 offen offset:{16*i}')
        tr += b.l
    tr = resolve_waits(tr)
    probs = check_hazards(tr, 'k2')
    idx = {x.meta['name']: k for k, x in enumerate(tr) if x.kind == 'mark'}
    its = [tr[idx[f'it{j}'] + 1: idx[f'it{j+1}']] for j in range(32)]
    for j in range(3, 29):
        assert [x.text for x in its[j]] == [x.text for x in its[j - 2]], j
    for lab, bb, j in (('p0', 1, 0), ('a', 0, 1), ('b', 1, 2), ('p29', 0, 29), ('p30', 1, 30)):
        probs += check_hazards(its[j][-80:] + slow_path(bb, lab) + its[j + 1][:80], 'slow' + lab)
    for p_ in probs: print('HAZARD', p_)
    out = tr[:idx['it1']] + [P(f's_mov_b32 s{sCnt}, 14'), P('.p2align 6'), P('K2_loop:')] + its[1] + its[2] + \
          [P(f's_sub_u32 s{sCnt}, s{sCnt}, 1'), P(f's_cmp_lg_u32 s{sCnt}, 0'), P('s_cbranch_scc1 K2_loop')] + tr[idx['it29']:]
    out += [P('K2_end:'), P('s_endpgm')]
    for lab, bb in (('p0', 1), ('a', 0), ('b', 1), ('p29', 0), ('p30', 1)): out += slow_path(bb, lab)
    return out
if __name__ == '__main__':
    s = k2()
    print(len(s))
```

```python
from common import *
from k1 import ln_finish
def k3():
    b = B()
    b(f'''s_cmp_ge_u32 s2, 256
    s_cbranch_scc1 K3_end
    s_load_dwordx2 s[4:5], s[0:1], {A_X}
    s_load_dwordx2 s[6:7], s[0:1], {A_WS}
    s_load_dwordx2 s[8:9], s[0:1], {A_WR}
    s_load_dwordx2 s[10:11], s[0:1], {A_OUT}
    v_lshlrev_b32 v1, 4, v0
    s_mul_i32 s3, s2, {16 * 7168}
    s_add_u32 s3, s3, {WS_PART}
    s_waitcnt lgkmcnt(0)''')
    srd(b, 12, 6, 's3', 16 * 7168)
    b('s_mov_b32 s33, 0')
    for h in range(16):
        b(f'buffer_load_dwordx4 v[{64+4*h}:{67+4*h}], v1, s[12:15], s33 offen')
        if h < 15: b('s_add_u32 s33, s33, 7168')
    b(f's_mul_i32 s3, s2, {8 * 896}')
    srd(b, 16, 4, 's3', 8 * 896)
    srd(b, 20, 10, 's3', 8 * 896)
    srd(b, 24, 6, WS_MOD + 4096, 8192)
    srd(b, 28, 8, 0, 896)
    b('''v_lshrrev_b32 v2, 5, v0
    v_bfe_u32 v3, v0, 2, 3
    v_and_b32 v4, 3, v0
    v_lshlrev_b32 v5, 5, v2
    v_lshl_add_u32 v5, v4, 2, v5
    v_mul_u32_u24 v6, 896, v3
    v_lshl_add_u32 v6, v5, 1, v6
    v_lshlrev_b32 v7, 2, v5
    v_lshlrev_b32 v8, 1, v5
    buffer_load_dwordx2 v[10:11], v6, s[16:19], 0 offen
    buffer_load_dwordx2 v[12:13], v6, s[16:19], 0 offen offset:32
    buffer_load_dwordx2 v[14:15], v8, s[28:31], 0 offen
    buffer_load_dwordx2 v[16:17], v8, s[28:31], 0 offen offset:32''')
    for i in range(4):
        b(f's_mov_b32 s33, {2048*i}')
        b(f'buffer_load_dwordx4 v[{128+8*i}:{131+8*i}], v7, s[24:27], s33 offen')
        b(f'buffer_load_dwordx4 v[{132+8*i}:{135+8*i}], v7, s[24:27], s33 offen offset:64')
    for h in range(16):
        b(f's_waitcnt vmcnt({27-h})')
        for j in range(4):
            w = 64 + 4 * h + j
            if h == 0:
                b(f'v_lshlrev_b32 v{24+2*j}, 16, v{w}\nv_and_b32 v{25+2*j}, 0xffff0000, v{w}')
            else:
                b(f'''v_lshlrev_b32 v20, 16, v{w}
                v_and_b32 v21, 0xffff0000, v{w}
                v_add_f32 v{24+2*j}, v{24+2*j}, v20
                v_add_f32 v{25+2*j}, v{25+2*j}, v21''')
    b('s_waitcnt vmcnt(0)')
    def round_pairs(base, n=8):
        for j in range(0, n, 2):
            b(f'''v_cvt_pk_bf16_f32 v{base+j+1}, v{base+j}, v{base+j+1}
            v_lshlrev_b32 v{base+j}, 16, v{base+j+1}
            v_and_b32 v{base+j+1}, 0xffff0000, v{base+j+1}''')
    round_pairs(24)
    for j in range(8): b(f'v_mul_f32 v{24+j}, v{24+j}, v{128+j}')
    round_pairs(24)
    for j in range(4):
        b(f'''v_lshlrev_b32 v20, 16, v{10+j}
        v_and_b32 v21, 0xffff0000, v{10+j}
        v_add_f32 v{24+2*j}, v{24+2*j}, v20
        v_add_f32 v{25+2*j}, v{25+2*j}, v21''')
    round_pairs(24)
    b('v_add_f32 v32, v24, v25\nv_mul_f32 v33, v24, v24\nv_fmac_f32 v33, v25, v25')
    for j in range(2, 8): b(f'v_add_f32 v32, v32, v{24+j}\nv_fmac_f32 v33, v{24+j}, v{24+j}')
    allreduce(b, [32, 33], [34, 35], steps=(1, 2, 32))
    b('''v_lshrrev_b32 v9, 6, v0
    v_lshlrev_b32 v18, 6, v3
    v_lshl_add_u32 v19, v9, 3, v18
    ds_write_b64 v19, v[32:33]
    s_waitcnt lgkmcnt(0)
    s_barrier
    ds_read_b128 v[40:43], v18
    ds_read_b128 v[44:47], v18 offset:16
    ds_read_b128 v[48:51], v18 offset:32
    ds_read_b64 v[52:53], v18 offset:48
    s_waitcnt lgkmcnt(0)''')
    b('v_add_f32 v32, v40, v42\nv_add_f32 v33, v41, v43')
    for j in range(44, 54, 2): b(f'v_add_f32 v32, v32, v{j}\nv_add_f32 v33, v33, v{j+1}')
    ln_finish(b, 32, 33, 34)
    for j in range(8): b(f'v_sub_f32 v{40+j}, v{24+j}, v32')
    round_pairs(40)
    for j in range(8): b(f'v_mul_f32 v{40+j}, v{40+j}, v34')
    round_pairs(40)
    for j in range(8): b(f'v_mul_f32 v{40+j}, v{40+j}, v{144+j}')
    round_pairs(40)
    for j in range(8): b(f'v_add_f32 v{40+j}, v{40+j}, v{136+j}')
    round_pairs(40)
    b('v_mov_b32 v36, 0')
    for j in range(4):
        b(f'''v_lshlrev_b32 v20, 16, v{14+j}
        v_and_b32 v21, 0xffff0000, v{14+j}
        v_fmac_f32 v36, v20, v{40+2*j}
        v_fmac_f32 v36, v21, v{41+2*j}''')
    allreduce(b, [36], [37], steps=(1, 2, 32))
    b('''v_lshlrev_b32 v18, 5, v3
    v_lshl_add_u32 v19, v9, 2, v18
    ds_write_b32 v19, v36 offset:512''')
    for j in range(8): b(f'v_mul_f32 v{48+j}, v{40+j}, v{152+j}')
    round_pairs(48)
    for j in range(8): b(f'v_add_f32 v{48+j}, v{48+j}, v{24+j}')
    for j in range(4): b(f'v_cvt_pk_bf16_f32 v{56+j}, v{48+2*j}, v{49+2*j}')
    b('''buffer_store_dwordx2 v[56:57], v6, s[20:23], 0 offen
    buffer_store_dwordx2 v[58:59], v6, s[20:23], 0 offen offset:32
    s_waitcnt lgkmcnt(0)
    s_barrier
    ds_read_b128 v[60:63], v18 offset:512
    ds_read_b96 v[64:66], v18 offset:528
    s_waitcnt lgkmcnt(0)
    v_add_f32 v36, v60, v61
    v_add_f32 v37, v62, v63
    v_add_f32 v38, v64, v65
    v_add_f32 v36, v36, v66
    v_add_f32 v37, v37, v38
    v_add_f32 v36, v36, v37''')
    bf16_round(b, 36)
    b('''v_ashrrev_i32 v37, 31, v36
    v_or_b32 v37, 0x80000000, v37
    v_xor_b32 v37, v37, v36
    v_and_b32 v37, 0xffff0000, v37
    s_lshl_b32 s3, s2, 3
    s_sub_u32 s3, 2047, s3
    v_sub_u32 v38, s3, v3
    v_or_b32 v37, v37, v38
    v_mov_b32 v38, v37
    s_nop 1
    v_max_u32_dpp v38, v38, v38 row_ror:4 row_mask:0xf bank_mask:0xf
    s_nop 1
    v_max_u32_dpp v38, v38, v38 row_ror:8 row_mask:0xf bank_mask:0xf''')
    allreduce(b, [38], [39], op='v_max_u32', steps=(16,))
    b(f's_mul_i32 s3, s2, 1792\ns_add_u32 s34, s3, {WS_H2}')
    srd(b, 12, 6, 's34', 1792)
    b(f's_add_u32 s34, s3, {WS_X1}')
    srd(b, 16, 6, 's34', 1792)
    srd(b, 24, 6, WS_CAND, 1024)
    b('''v_cmp_eq_u32 vcc, v37, v38
    s_and_saveexec_b64 s[36:37], vcc
    buffer_store_dwordx4 v[40:43], v7, s[12:15], 0 offen
    buffer_store_dwordx4 v[44:47], v7, s[12:15], 0 offen offset:64
    buffer_store_dwordx4 v[24:27], v7, s[16:19], 0 offen
    buffer_store_dwordx4 v[28:31], v7, s[16:19], 0 offen offset:64
    s_mov_b64 exec, s[36:37]
    v_cmp_eq_u32 vcc, 0, v0
    s_lshl_b32 s3, s2, 2
    s_and_saveexec_b64 s[36:37], vcc
    s_cbranch_execz K3_end
    buffer_store_dword v38, v0, s[24:27], s3 offen
    K3_end:
    s_endpgm''')
    return b.l
if __name__ == '__main__':
    s = k3()
    for p in check_hazards(s, 'k3'): print(p)
```

```python
from common import *
NW4 = 56
def k4():
    b = B()
    b(f'''s_cmp_ge_u32 s2, {NW4}
    s_cbranch_scc1 K4_end
    s_load_dwordx4 s[4:7], s[0:1], {A_WG}
    s_load_dwordx2 s[8:9], s[0:1], {A_WD}
    s_load_dwordx4 s[40:43], s[0:1], {A_OUT}
    s_load_dwordx2 s[10:11], s[0:1], {A_WS}
    v_and_b32 v1, 63, v0
    v_lshrrev_b32 v2, 6, v0
    s_lshl_b32 s3, s2, 6
    s_waitcnt lgkmcnt(0)''')
    srd(b, 24, 10, WS_CAND, 1024)
    b('v_lshlrev_b32 v3, 2, v0\nbuffer_load_dword v8, v3, s[24:27], 0 offen')
    srd(b, 12, 4, 's3', 0); b(f's_sub_u32 s14, {448*3584}, s3')
    srd(b, 16, 6, 's3', 0); b(f's_sub_u32 s18, {448*3584}, s3')
    b(f's_mul_i32 s3, s2, {32*896}')
    srd(b, 20, 8, 's3', 32 * 896)
    b('''v_and_b32 v4, 3, v0
    v_lshrrev_b32 v5, 2, v0
    v_mul_u32_u24 v6, 3584, v5
    v_lshl_add_u32 v6, v4, 4, v6
    s_mov_b32 s33, 0''')
    for i in range(7):
        b(f'buffer_load_dwordx4 v[{64+4*i}:{67+4*i}], v6, s[12:15], s33 offen')
        b(f'buffer_load_dwordx4 v[{92+4*i}:{95+4*i}], v6, s[16:19], s33 offen')
        if i < 6: b(f's_add_u32 s33, s33, {64*3584}')
    b('''v_mul_u32_u24 v7, 1171, v0
    v_lshrrev_b32 v7, 16, v7
    v_mul_u32_u24 v9, 56, v7
    v_sub_u32 v9, v0, v9
    v_mul_u32_u24 v10, 896, v7
    v_lshl_add_u32 v10, v9, 4, v10
    v_cmp_gt_u32 vcc, 224, v0
    v_mov_b32 v11, 0x7fffffff
    s_nop 0
    v_cndmask_b32 v10, v11, v10, vcc
    s_mov_b32 s33, 0''')
    for i in range(8):
        b(f'buffer_load_dwordx4 v[{120+4*i}:{123+4*i}], v10, s[20:23], s33 offen')
        if i < 7: b('s_add_u32 s33, s33, 3584')
    b('s_waitcnt vmcnt(22)')
    allreduce(b, [8], [11], op='v_max_u32')
    b('''v_lshlrev_b32 v11, 2, v2
    ds_write_b32 v11, v8 offset:8192
    v_mov_b32 v12, 0
    s_waitcnt lgkmcnt(0)
    s_barrier
    ds_read_b128 v[12:15], v12 offset:8192
    s_waitcnt lgkmcnt(0)
    v_max_u32 v12, v12, v13
    v_max_u32 v14, v14, v15
    v_max_u32 v12, v12, v14
    s_nop 0
    v_readfirstlane_b32 s44, v12
    s_nop 3
    s_and_b32 s45, s44, 2047
    s_sub_u32 s45, 2047, s45
    s_lshr_b32 s46, s45, 3
    s_mul_i32 s46, s46, 1792''')
    srd(b, 28, 10, WS_H2, 256 * 1792)
    b('v_lshlrev_b32 v11, 2, v5')
    for i in range(7): b(f'buffer_load_dword v{16+i}, v11, s[28:31], s46 offen offset:{256*i}')
    for c in range(16): b(f'v_mov_b32 v{32+c}, 0')
    b('s_waitcnt vmcnt(0)')
    for i in range(7):
        for m in range(2):
            for j in range(4):
                w = (64, 92)[m] + 4 * i + j
                b(f'''v_lshlrev_b32 v12, 16, v{w}
                v_and_b32 v13, 0xffff0000, v{w}
                v_fmac_f32 v{32+8*m+2*j}, v12, v{16+i}
                v_fmac_f32 v{33+8*m+2*j}, v13, v{16+i}''')
    b('s_nop 1')
    for c in range(16): b(f'v_add_f32_dpp v{32+c}, v{32+c}, v{32+c} row_ror:4 row_mask:0xf bank_mask:0xf')
    allreduce(b, list(range(32, 48)), list(range(48, 64)), steps=(8, 16, 32))
    b('''v_lshlrev_b32 v11, 5, v4
    v_lshl_add_u32 v11, v2, 8, v11
    v_cmp_gt_u32 vcc, 4, v1
    s_and_saveexec_b64 s[36:37], vcc
    ds_write_b128 v11, v[32:35]
    ds_write_b128 v11, v[36:39] offset:16
    ds_write_b128 v11, v[40:43] offset:128
    ds_write_b128 v11, v[44:47] offset:144
    s_mov_b64 exec, s[36:37]
    s_waitcnt lgkmcnt(0)
    s_barrier
    v_and_b32 v11, 31, v0
    v_lshlrev_b32 v11, 2, v11''')
    for w in range(4):
        b(f'ds_read_b32 v{12+w}, v11 offset:{256*w}\nds_read_b32 v{16+w}, v11 offset:{256*w+128}')
    b('''s_waitcnt lgkmcnt(0)
    v_add_f32 v12, v12, v13
    v_add_f32 v14, v14, v15
    v_add_f32 v16, v16, v17
    v_add_f32 v18, v18, v19
    v_add_f32 v12, v12, v14
    v_add_f32 v16, v16, v18''')
    bf16_round(b, 12); bf16_round(b, 16)
    b(f'''v_mul_f32 v13, {f32hex(-math.log2(math.e))}, v12
    v_exp_f32 v13, v13
    s_nop 0
    v_add_f32 v13, 1.0, v13
    v_rcp_f32 v13, v13
    s_nop 0
    v_mul_f32 v12, v12, v13''')
    bf16_round(b, 12)
    b('v_mul_f32 v12, v12, v16')
    bf16_round(b, 12)
    b('''v_lshl_add_u32 v11, v2, 7, v11
    ds_write_b32 v11, v12 offset:1024
    v_lshlrev_b32 v11, 2, v7
    v_lshl_add_u32 v11, v2, 7, v11
    s_waitcnt lgkmcnt(0)''')
    for i in range(8): b(f'ds_read_b32 v{16+i}, v11 offset:{1024+16*i}')
    for c in range(8): b(f'v_mov_b32 v{32+c}, 0')
    b('s_waitcnt lgkmcnt(0)')
    for i in range(8):
        for j in range(4):
            w = 120 + 4 * i + j
            b(f'''v_lshlrev_b32 v12, 16, v{w}
            v_and_b32 v13, 0xffff0000, v{w}
            v_fmac_f32 v{32+2*j}, v12, v{16+i}
            v_fmac_f32 v{33+2*j}, v13, v{16+i}''')
    b('''v_mul_u32_u24 v11, 1792, v7
    v_lshl_add_u32 v11, v9, 5, v11
    ds_write_b128 v11, v[32:35] offset:10240
    ds_write_b128 v11, v[36:39] offset:10256
    s_waitcnt lgkmcnt(0)
    s_barrier
    v_lshlrev_b32 v11, 4, v0
    v_cmp_gt_u32 vcc, 112, v0
    v_mov_b32 v3, 0x7fffffff
    s_nop 0
    v_cndmask_b32 v3, v3, v11, vcc''')
    for r in range(4): b(f'ds_read_b128 v[{16+4*r}:{19+4*r}], v11 offset:{10240+1792*r}')
    b(f's_mul_i32 s3, s2, 1792\ns_add_u32 s3, s3, {WS_Y}')
    srd(b, 12, 10, 's3', 1792)
    b('s_waitcnt lgkmcnt(0)')
    for j in range(4):
        b(f'v_add_f32 v{16+j}, v{16+j}, v{20+j}\nv_add_f32 v{24+j}, v{24+j}, v{28+j}\nv_add_f32 v{16+j}, v{16+j}, v{24+j}')
    srd(b, 16, 42, 0, 256)
    b('''buffer_store_dwordx4 v[16:19], v3, s[12:15], 0 offen sc1
    s_waitcnt vmcnt(0)
    s_barrier
    v_cmp_eq_u32 vcc, 0, v0
    s_and_saveexec_b64 s[36:37], vcc
    s_cbranch_execz K4_skipatomic
    v_mov_b32 v12, 1
    buffer_atomic_add v12, v0, s[16:19], 0 offen sc0
    s_waitcnt vmcnt(0)
    ds_write_b32 v0, v12 offset:8192
    K4_skipatomic:
    s_mov_b64 exec, s[36:37]
    s_waitcnt lgkmcnt(0)
    s_barrier
    v_mov_b32 v12, 0
    ds_read_b32 v12, v12 offset:8192
    s_waitcnt lgkmcnt(0)
    v_readfirstlane_b32 s47, v12
    s_nop 3''')
    b(f's_cmp_lg_u32 s47, {NW4-1}\ns_cbranch_scc1 K4_end')
    srd(b, 12, 10, WS_Y, NW4 * 1792)
    srd(b, 20, 10, WS_X1, 256 * 1792)
    srd(b, 24, 10, WS_MOD + 4096 + 3 * 2048, 1792)
    b(f'''v_cmp_gt_u32 vcc, 112, v0
    v_subrev_u32 v11, 112, v0
    s_nop 0
    v_cndmask_b32 v11, v11, v0, vcc
    v_lshlrev_b32 v11, 4, v11
    v_mov_b32 v12, {28*1792}
    v_cndmask_b32 v12, v12, 0, vcc
    v_add_u32 v12, v12, v11
    v_cmp_gt_u32 vcc, 224, v0
    v_mov_b32 v13, 0x7fffffff
    s_nop 0
    v_cndmask_b32 v12, v13, v12, vcc
    s_mov_b32 s33, 0''')
    for i in range(28):
        b(f'buffer_load_dwordx4 v[{64+4*i}:{67+4*i}], v12, s[12:15], s33 offen sc1')
        if i < 27: b('s_add_u32 s33, s33, 1792')
    b('''buffer_load_dwordx4 v[16:19], v3, s[28:31], s46 offen
    buffer_load_dwordx4 v[20:23], v3, s[20:23], s46 offen
    buffer_load_dwordx4 v[24:27], v3, s[24:27], 0 offen''')
    b(f'''s_and_b32 s48, s44, 0xffff0000
    s_xor_b32 s49, s48, 0x80000000
    s_xor_b32 s50, s48, 0xffff0000
    s_cmp_lt_i32 s48, 0
    s_cselect_b32 s48, s49, s50
    v_mov_b32 v28, s48
    v_mul_f32 v28, {f32hex(-math.log2(math.e))}, v28
    v_exp_f32 v28, v28
    s_nop 0
    v_add_f32 v28, 1.0, v28
    v_rcp_f32 v28, v28
    s_nop 0''')
    bf16_round(b, 28)
    for i in range(1, 28):
        b(f's_waitcnt vmcnt({3 + 27 - i})')
        for j in range(4): b(f'v_add_f32 v{64+j}, v{64+j}, v{64+4*i+j}')
    b('''v_lshlrev_b32 v11, 4, v0
    ds_write_b128 v11, v[64:67]
    s_waitcnt lgkmcnt(0)
    s_barrier
    ds_read_b128 v[68:71], v11 offset:1792
    s_waitcnt vmcnt(0) lgkmcnt(0)''')
    for j in range(4):
        b(f'v_add_f32 v{64+j}, v{64+j}, v{68+j}'); bf16_round(b, 64 + j)
        b(f'v_mul_f32 v{64+j}, v{64+j}, v28'); bf16_round(b, 64 + j)
        b(f'v_add_f32 v{64+j}, v{64+j}, v{16+j}'); bf16_round(b, 64 + j)
        b(f'v_mul_f32 v{64+j}, v{64+j}, v{24+j}'); bf16_round(b, 64 + j)
        b(f'v_add_f32 v{64+j}, v{64+j}, v{20+j}')
    b('s_mul_i32 s3, s45, 896')
    srd(b, 12, 40, 's3', 896)
    b('''v_cvt_pk_bf16_f32 v64, v64, v65
    v_cvt_pk_bf16_f32 v65, v66, v67
    v_lshlrev_b32 v11, 3, v0
    buffer_store_dwordx2 v[64:65], v11, s[12:15], 0 offen
    K4_end:
    s_endpgm''')
    return b.l
if __name__ == '__main__':
    s = k4()
    for p in check_hazards(s, 'k4'): print(p)
```

```python
import sys
from common import *
import k1, k2, k3, k4
NAME = 'adaLN_cond__mha_block_cached__moe_arch_mod__prompt'
def build(opt2=None, extra_launches=0):
    ref = open(f'cdna_kernels/{NAME}.s.ref').read().split('\n')
    hdr = [l for l in ref if l.startswith(';') and '@launch' not in l and 'Override launch' not in l and 'grid=ceil' not in l]
    ks = [('prep_kernel', k1.k1(), (298, 256, 2048), (104, 104)),
          ('attn_kernel', k2.k2(opt2), (256, 256, k2.LDS2), (512, 256)),
          ('norm_kernel', k3.k3(), (256, 448, 1024), (160, 160)),
          ('moe_kernel', k4.k4(), (56, 256, 20480), (176, 176))]
    out = '\n'.join(hdr) + '\n'
    for n, s, (g, bl, lds), _ in ks:
        out += f'; @launch kernel={n} grid=({g},1,1) block=({bl},1,1) lds={lds}\n'
    out += '.amdgcn_target "amdgcn-amd-amdhsa--gfx950"\n.text\n'
    for n, s, _, (nv, acc) in ks:
        if n != 'attn_kernel':
            for p in check_hazards(s, n): print('HAZARD', p)
        out += kernel_text(n, s, nv, acc)
    out += '.section .rodata,"a"\n'
    for n, s, _, (nv, acc) in ks:
        out += '.p2align 6\n' + kernel_desc(n, nv, acc)
    return out
if __name__ == '__main__':
    open(f'cdna_kernels/{NAME}.s', 'w').write(build())
    o = k2.Opt2(); o.stamp = True
    open('full_stamp.s', 'w').write(build(o))
```
